```python
import torch

def _softmax(x, axis=-1):
    return torch.softmax(x, dim=axis)
def _gelu(x):
    return torch.nn.functional.gelu(x, approximate="tanh")
def _silu(x):
    return torch.nn.functional.silu(x)
def _sigmoid(x):
    return torch.sigmoid(x)
def _layernorm(x, axis=-1, eps=1e-5):
    m = x.mean(dim=axis, keepdim=True)
    v = x.var(dim=axis, keepdim=True, unbiased=False)
    return (x - m) / torch.sqrt(v + eps)
def _scatter_add(tgt, idx, src, axis=0):
    return tgt.clone().index_add_(axis, idx, src)
def _segment_sum(src, seg, n):
    out = torch.zeros((n,) + src.shape[1:], dtype=src.dtype)
    return out.index_add_(0, seg, src)
def _pad(x, pw):
    flat = tuple(v for pair in reversed(pw) for v in pair)
    return torch.nn.functional.pad(x, flat)

kernel_name = 'concat_heads__mha_block_cached__gqa_block_cached__near_ridge'

def setup_inputs():

    _w = (lambda a: (lambda t: t.to(torch.bfloat16) if t.is_floating_point() else t)(torch.as_tensor(a)))
    def _A_setup():
        B, Sq, D = 8, 128, 576
        H, Sk, Dh = 32, 128, 128
        return {
            "x": _w((lambda *s: torch.randn(*s, dtype=torch.bfloat16) * 0.8)(B, Sq, D)),
            "k_cache": _w((lambda *s: torch.randn(*s, dtype=torch.bfloat16) * 0.8)(B, H, Sk, Dh)),
            "v_cache": _w((lambda *s: torch.randn(*s, dtype=torch.bfloat16) * 0.05)(B, H, Sk, Dh)),
            "wq": _w((lambda *s: torch.randn(*s, dtype=torch.bfloat16) * 0.8)(D, H * Dh) * (D ** -0.5)),
            "wo": _w((lambda *s: torch.randn(*s, dtype=torch.bfloat16) * 0.05)(H * Dh, D) * ((H * Dh) ** -0.5)),
        }
    _A_in = _A_setup()

    def _B_setup():
        B, Sq, D = 8, 128, 576
        Hq, Hkv, Sk, Dh = 32, 32, 128, 128
        assert Hq % Hkv == 0, (Hq, Hkv)
        return {
            "x": _w((lambda *s: torch.randn(*s, dtype=torch.bfloat16) * 0.8)(B, Sq, D)),
            "k_cache": _w((lambda *s: torch.randn(*s, dtype=torch.bfloat16) * 0.8)(B, Hkv, Sk, Dh)),
            "v_cache": _w((lambda *s: torch.randn(*s, dtype=torch.bfloat16) * 0.05)(B, Hkv, Sk, Dh)),
            "wq": _w((lambda *s: torch.randn(*s, dtype=torch.bfloat16) * 0.8)(D, Hq * Dh) * (D ** -0.5)),
            "wo": _w((lambda *s: torch.randn(*s, dtype=torch.bfloat16) * 0.05)(Hq * Dh, D) * ((Hq * Dh) ** -0.5)),
        }
    _B_in = _B_setup()

    return {
        "A_x": _A_in["x"],
        "A_k_cache": _A_in["k_cache"],
        "A_v_cache": _A_in["v_cache"],
        "A_wq": _A_in["wq"],
        "A_wo": _A_in["wo"],
        "B_x": _B_in["x"],
        "B_k_cache": _B_in["k_cache"],
        "B_v_cache": _B_in["v_cache"],
        "B_wq": _B_in["wq"],
        "B_wo": _B_in["wo"],
    }

def reference(A_x, A_k_cache, A_v_cache, A_wq, A_wo, B_x, B_k_cache, B_v_cache, B_wq, B_wo):
    def _A_ref(x, k_cache, v_cache, wq, wo):
        B, Sq, D = x.shape
        H, Dh = 32, 128
        q = (lambda x, *d: x.permute(*d))((x @ wq).reshape(B, Sq, H, Dh), 0, 2, 1, 3)
        scores = torch.einsum("bhqd,bhkd->bhqk", q, k_cache) * (Dh ** -0.5)
        p = _softmax(scores, axis=-1)
        o = torch.einsum("bhqk,bhkd->bhqd", p, v_cache)
        return (lambda x, *d: x.permute(*d))(o, 0, 2, 1, 3).reshape(B, Sq, H * Dh) @ wo

    def _B_ref(x, k_cache, v_cache, wq, wo):
        B, Sq, D = x.shape
        Hq, Dh = 32, 128
        Hkv = k_cache.shape[1]
        rep = Hq // Hkv
        q = (lambda x, *d: x.permute(*d))((x @ wq).reshape(B, Sq, Hq, Dh), 0, 2, 1, 3)
        k = (lambda x, n, axis: torch.repeat_interleave(x, n, dim=axis))(k_cache, rep, axis=1)
        v = (lambda x, n, axis: torch.repeat_interleave(x, n, dim=axis))(v_cache, rep, axis=1)
        scores = torch.einsum("bhqd,bhkd->bhqk", q, k) * (Dh ** -0.5)
        p = _softmax(scores, axis=-1)
        o = torch.einsum("bhqk,bhkd->bhqd", p, v)
        return (lambda x, *d: x.permute(*d))(o, 0, 2, 1, 3).reshape(B, Sq, Hq * Dh) @ wo

    a = _A_ref(A_x, A_k_cache, A_v_cache, A_wq, A_wo)
    b = _B_ref(B_x, B_k_cache, B_v_cache, B_wq, B_wo)
    return torch.concatenate([a, b], axis=-1)
```

```python
import re


def vr(base, n=1):
    return f"v{base}" if n == 1 else f"v[{base}:{base + n - 1}]"


def rng(base, n):
    return list(range(base, base + n))


class I:
    __slots__ = ("text", "kind", "rd", "wr", "tag", "cost", "csrc", "sw", "sr")

    def __init__(self, text, kind, rd=(), wr=(), tag=None, cost=1, csrc=(), sw=(), sr=()):
        self.text = text
        self.kind = kind
        self.rd = list(rd)
        self.wr = list(wr)
        self.tag = tag
        self.cost = cost
        self.csrc = list(csrc)
        self.sw = list(sw)
        self.sr = list(sr)


def mfma(d, a, b, c0=False):
    c = "0" if c0 else vr(d, 16)
    return I(f"v_mfma_f32_32x32x16_bf16 {vr(d,16)}, {vr(a,4)}, {vr(b,4)}, {c}", "mfma",
             rd=rng(a, 4) + rng(b, 4), wr=rng(d, 16), csrc=[] if c0 else rng(d, 16))


def valu(text, rd=(), wr=(), sw=(), sr=()):
    return I(text, "valu", rd, wr, sw=sw, sr=sr)


def trans(text, rd=(), wr=()):
    return I(text, "trans", rd, wr, cost=2)


def salu(text):
    return I(text, "salu")


def label(name):
    return I(name + ":", "label", cost=0)


class Stream:
    def __init__(self):
        self.out = []
        self.state = 0
        self.valu_w = {}
        self.trans_w = {}
        self.mfma_w = {}
        self.mfma_c = {}
        self.st_data = {}
        self.sgpr_vw = {}
        self.lg = []
        self.vm = []
        self.nops = 0
        self.marks = {}
        self.nvm = 0
        self.nwaits = 0
        self.ninstr = 0

    def raw(self, text, states=1):
        self.out.append(text)
        self.state += states
        self.ninstr += 1

    def wait(self, vm=None, lg=None):
        parts = []
        if vm is not None:
            vm = min(vm, 63)
            if len(self.vm) > vm:
                self.vm = self.vm[len(self.vm) - vm:] if vm else []
                parts.append(f"vmcnt({vm})")
        if lg is not None:
            lg = min(lg, 15)
            if len(self.lg) > lg:
                self.lg = self.lg[len(self.lg) - lg:] if lg else []
                parts.append(f"lgkmcnt({lg})")
        if parts:
            self.raw("s_waitcnt " + " ".join(parts))
            self.nwaits += 1

    def _need(self, q, regs):
        n = None
        for p, (dest, _) in enumerate(q):
            if dest & regs:
                n = len(q) - 1 - p
        return n

    def emit(self, x):
        k = x.kind
        if k == "label":
            self.out.append(x.text)
            return
        if k == "raw":
            self.raw(x.text)
            return
        if k == "waitvm":
            idx = None
            for p, (_, t) in enumerate(self.vm):
                if t == x.tag:
                    idx = p
            if idx is not None:
                self.wait(vm=len(self.vm) - 1 - idx)
            return
        if k == "markvm":
            self.marks[x.tag] = min(63, self.nvm)
            return
        if k == "phantom":
            self.nvm += 1
            self.vm.append((set(x.wr), None))
            for r in x.wr:
                self.mfma_w.pop(r, None)
                self.valu_w.pop(r, None)
            return
        if k == "waitall":
            self.wait(vm=0, lg=0)
            return
        if k == "waitlg0":
            self.wait(lg=0)
            return
        regs = set(x.rd) | set(x.wr) | set(x.csrc)
        self.wait(vm=self._need(self.vm, regs), lg=self._need(self.lg, regs))
        need = 0

        def req(tab, rs, n):
            nonlocal need
            for r in rs:
                if r in tab:
                    need = max(need, tab[r] + 1 + n - self.state)
        if k == "mfma":
            req(self.valu_w, x.rd + x.csrc, 2)
            req(self.mfma_w, x.rd, 12)
            if not x.csrc:
                req(self.mfma_w, x.wr, 12)
        elif k in ("valu", "trans", "perm"):
            req(self.mfma_w, x.rd + x.wr, 12)
            req(self.mfma_c, x.wr, 7)
            req(self.st_data, x.wr, 2)
            if k != "trans":
                req(self.trans_w, x.rd, 1)
            else:
                req(self.trans_w, x.rd, 1)
            if k == "perm":
                req(self.valu_w, x.rd + x.wr, 2)
            if "readlane" in x.text or "readfirstlane" in x.text:
                req(self.valu_w, x.rd, 1)
            req(self.sgpr_vw, x.sr, 2)
        elif k in ("ldsr", "ldsw", "vld", "vst"):
            req(self.mfma_w, x.rd + x.wr, 12)
            req(self.st_data, x.wr, 2)
            req(self.trans_w, x.rd, 1)
            if k in ("vld", "vst"):
                req(self.sgpr_vw, x.sr, 5)
        elif k in ("salu", "br"):
            req(self.sgpr_vw, x.sr, 1)
        while need > 0:
            n = min(need, 16)
            self.raw(f"s_nop {n - 1}", n)
            self.nops += n
            need -= n
        at = self.state
        self.raw(x.text)
        if k == "mfma":
            for r in x.wr:
                self.mfma_w[r] = at
            for r in x.csrc:
                self.mfma_c[r] = at
        elif k in ("valu", "trans", "perm"):
            for r in x.wr:
                self.valu_w[r] = at
                self.mfma_w.pop(r, None)
                if k == "trans":
                    self.trans_w[r] = at
                else:
                    self.trans_w.pop(r, None)
            for s in x.sw:
                self.sgpr_vw[s] = at
        elif k == "ldsr":
            self.lg.append((set(x.wr), x.tag))
            for r in x.wr:
                self.mfma_w.pop(r, None)
                self.valu_w.pop(r, None)
        elif k == "ldsw":
            self.lg.append((set(), x.tag))
        elif k == "vld":
            self.nvm += 1
            self.vm.append((set(x.wr), x.tag))
            for r in x.wr:
                self.mfma_w.pop(r, None)
                self.valu_w.pop(r, None)
        elif k == "vst":
            self.nvm += 1
            self.vm.append((set(), x.tag))
            for r in x.rd:
                self.st_data[r] = at

    def text(self):
        return "\n".join(self.out) + "\n"
```

```python
import sys
from emit import *

KNAME = "concat_heads__mha_block_cached__gqa_block_cached__near_ridge_kernel"

DEFAULT = dict(
    stamps=False,
    la=4,
    budget=5,
    thr=10,
    order=None,
    kv_mod=" nt",
    common=1,
    out_mod="", pst_mod=" sc1", pld_mod=" sc1", clr_mod=" sc1", ost_mod=" sc1", x_mod="", wq_mod="", wo_mod="", o_mod="", two_mod="",
    try1=[("P01a", 10), ("P01b", 6), ("L81", 0)], blk1=("L81", 12), try2=[("P20a", 2), ("P20b", 2), ("P30a", 2)], blk2=("P30b", 0), poll_lead=10,
    psleep=2, pslow=15, pre_mod=' sc1 nt', own_at=130, pk=True, n1_start=100, n1_step=0, dual_flag=True, pairwait=True, early0=True, e0_split=60, e1_item=80, noclear=False,
    late=True,
    e1_pos=3, e2_at=44, e3_at=64,
    lsleep=1,
    spin_limit=1 << 18,
)

WS_FLAGS = 0x0
WS_FLAGS2 = 0x40000
WS_O = 0x100000
WS_PART = 0x1100000
WS_L8 = 0x1900000
WS_STAMP = 0x8000000
LDS_READY = 0x000
LDS_DONE = 0x7f0
SLOT0 = 4096
SLOT = 16384
NSLOT = 9
LDS_BYTES = SLOT0 + NSLOT * SLOT

S_WAVE, S_P, S_O, S_B, S_J, S_COMP, S_CID, S_W = 3, 4, 5, 6, 7, 8, 9, 10
SRD_X, SRD_K, SRD_V, SRD_WQ, SRD_WO, SRD_WS, SRD_OUT, SRD_DBG = 12, 16, 20, 24, 28, 32, 36, 40
S_T0, S_T1, S_T2, S_T3 = 44, 45, 46, 47
S_TAG = 56
S_SPIN = 57
S_SCALE = 58
S_T4 = 59
S_STAMP = 60
S_LINK = 92
S_NEED, S_RDY = 94, 95
S_TAB = 96
S_L1024 = 98
S_SOFF = 99
S_XB, S_WQB, S_KVB, S_WOB = 48, 49, 50, 51
S_BLK, S_OB, S_GB, S_ROT, S_HD, S_VAR = 52, 53, 54, 55, 11, 100
S_OST, S_FLAGA, S_PARTB, S_L8B, S_OUTB, S_INBOX, S_LEAD, S_GOT, S_OGB = 48, 49, 50, 51, 52, 53, 54, 55, 11


def srd(r):
    return f"s[{r}:{r + 3}]"


class Group:
    def __init__(self, name, kind, **kw):
        self.name = name
        self.kind = kind
        self.kw = kw
        self.need = None
        self.last = None
        self.slot = None
        self.free_req = 0

    @property
    def addr(self):
        return SLOT0 + self.slot * SLOT


def build_groups():
    G = {}
    for i in range(9):
        G[f"X{i}"] = Group(f"X{i}", "x", i=i)
        G[f"W{i}a"] = Group(f"W{i}a", "wq", i=i, sub=0)
        G[f"W{i}b"] = Group(f"W{i}b", "wq", i=i, sub=1)
    for h in range(2):
        for s, sub in enumerate("ab"):
            G[f"K{h}{sub}"] = Group(f"K{h}{sub}", "k", h=h, sub=s)
            G[f"V{h}{sub}"] = Group(f"V{h}{sub}", "v", h=h, sub=s)
        G[f"E{h}"] = Group(f"E{h}", "l8", h=h)
    for r in range(4):
        for h in range(2):
            for s, sub in enumerate("ab"):
                G[f"U{r}{h}{sub}"] = Group(f"U{r}{h}{sub}", "wo", r=r, h=h, sub=s)
                if r:
                    G[f"O{r}{h}{sub}"] = Group(f"O{r}{h}{sub}", "o", r=r, h=h, sub=s)
    G["Za"] = Group("Za", "z", sub=0)
    G["Zb"] = Group("Zb", "z", sub=1)
    return G


def default_order():
    o = []
    for i in range(9):
        o += [f"X{i}", f"W{i}a", f"W{i}b"]
    o += ["K0a", "K0b", "K1a", "K1b", "@two", "V0a", "V0b", "@tag", "U00a", "U00b", "V1a", "V1b", "E0", "U01a", "U01b", "E1"]
    o += ["R:Za", "R:Zb", "U10a", "U10b", "@zflag"]
    for h in range(2):
        for r in (1, 2, 3):
            for s in "ab":
                if (h, r) != (0, 1):
                    o.append(f"U{r}{h}{s}")
                o.append(f"O{r}{h}{s}")
    o += ["D:Za", "D:Zb"]
    return o


def T(i):
    return 16 * i


ARING, NA = 192, 6
BRING, NB = 216, 3
V_TR, V_TR8, V_XB0, V_XB1, V_KB0, V_KB1, V_LIN = 228, 229, 230, 231, 232, 233, 234
V_ZERO, V_FA, V_FLAG = 235, 236, 238
V_POOL, NPOOL = 239, 5
V_ST = 249
V_MX0, V_MX1, V_MC, V_SUM0, V_SUM1, V_RINV0, V_RINV1, V_TMP0, V_TMP1 = 244, 245, 246, 250, 248, 250, 248, 251, 252
V_TAG = 253
V_STALE = 72
V_FV = 254
V_OUTA = 255


class Load:
    def __init__(self, group, pat, offs, ring):
        self.group = group
        self.pat = pat
        self.offs = offs
        self.ring = ring
        self.reg = None


class M:
    def __init__(self, d, a, b, c0, stage):
        self.d, self.a, self.b, self.c0, self.stage = d, a, b, c0, stage


def tr_load(g, ks, t, extra=0):
    base = extra + ks * 4096 + t * 256
    return Load(g, V_TR, [base, base + 1024], "A")


class Gen:
    def __init__(self, **opt):
        self.o = dict(DEFAULT)
        self.o.update(opt)
        self.G = build_groups()
        self.stages = []
        self.ms = []
        self.mark = {}
        self.cnames = []
        self.tm = 's_memrealtime' if self.o.get('rt') else 's_memtime'
        self.lnames = []

    def stage(self, name):
        self.stages.append(dict(name=name, new=[]))
        return len(self.stages) - 1

    def use(self, g, st):
        if g.need is None:
            g.need = st
            self.stages[st]["new"].append(g)
        g.last = st

    def add(self, d, a, b, c0, st):
        for x in (a, b):
            if isinstance(x, Load):
                self.use(x.group, st)
        self.ms.append(M(d, a, b, c0, st))
        return len(self.ms) - 1

    def build_mfma(self):
        G = self.G
        mk = self.mark
        for i in range(9):
            X = G[f"X{i}"]
            for sub in range(2):
                W = G[f"W{i}{'ab'[sub]}"]
                st = self.stage(f"Q{i}{'ab'[sub]}")
                xf = []
                for ksl in range(2):
                    s = 2 * sub + ksl
                    xf.append(Load(X, V_XB0 + (s & 1), [(s >> 1) * 512], "B"))
                last = (i == 8 and sub == 1)
                seq = [(ksl, hh) for ksl in range(2) for hh in range(2)]
                if last:
                    seq = [(ksl, hh) for hh in range(2) for ksl in range(2)]
                for ksl, hh in seq:
                    for t in range(4):
                        c0 = (i == 0 and sub == 0 and ksl == 0)
                        idx = self.add(T(4 * hh + t), tr_load(W, ksl, t, hh * 8192), xf[ksl], c0, st)
                        mk[f"Qend{hh}{t}"] = idx
        for hh in range(2):
            for sub in range(2):
                K = G[f"K{hh}{'ab'[sub]}"]
                st = self.stage(f"S{hh}{'ab'[sub]}")
                for ktl in range(2):
                    kt = 2 * sub + ktl
                    for s in range(8):
                        a = Load(K, V_KB0 + (s & 1), [ktl * 8192 + (s >> 1) * 256], "A")
                        idx = self.add(T(4 * hh + kt), a, T(8 + 2 * hh) + 4 * s, s == 0, st)
                        mk[f"S{hh}use{s}"] = min(mk.get(f"S{hh}use{s}", 1 << 30), idx)
                        mk[f"Send{hh}{kt}"] = idx
        ob = [T(8), T(4)]

        def pv(hh):
            for sub in range(2):
                V = G[f"V{hh}{'ab'[sub]}"]
                st = self.stage(f"PV{hh}{'ab'[sub]}")
                for sl in range(4):
                    s = 4 * sub + sl
                    for dt in range(4):
                        idx = self.add(T(4 * hh + dt), tr_load(V, sl, dt), T(8 + 2 * hh) + 4 * s, s == 0, st)
                        if s == 0 and dt == 0:
                            mk[f"PVstart{hh}"] = idx
                        mk[f"PVend{hh}{dt}"] = idx

        def own(hh):
            for sub in range(2):
                U = G[f"U0{hh}{'ab'[sub]}"]
                st = self.stage(f"P0{hh}{'ab'[sub]}")
                for sl in range(4):
                    s = 4 * sub + sl
                    for t in range(4):
                        idx = self.add(T(t), ob[hh] + 4 * s, tr_load(U, sl, t), hh == 0 and s == 0, st)
                        mk.setdefault(f"st_P0{hh}{'ab'[sub]}", idx)
                        if t == 0:
                            mk[f"own{hh}use{s}"] = idx

        def l8(hh):
            E = G[f"E{hh}"]
            st = self.stage(f"L8{hh}")
            for s in range(8):
                for t in range(2):
                    base = s * 2048 + t * 256
                    b = Load(E, V_TR8, [base, base + 512], "A")
                    idx = self.add(T(10 + t), ob[hh] + 4 * s, b, hh == 0 and s == 0, st)
                    mk.setdefault(f"st_L8{hh}", idx)
                    mk[f"L8end{hh}{t}"] = idx

        if self.o["early0"]:
            pv(0); own(0); pv(1); l8(0); own(1); l8(1)
        else:
            pv(0); pv(1); own(0); l8(0); own(1); l8(1)
        for hh in range(2):
            for r in (1, 2, 3):
                for sub in range(2):
                    U = G[f"U{r}{hh}{'ab'[sub]}"]
                    O = G[f"O{r}{hh}{'ab'[sub]}"]
                    st = self.stage(f"P{r}{hh}{'ab'[sub]}")
                    for sl in range(4):
                        a = Load(O, V_LIN, [sl * 4096], "B")
                        for t in range(4):
                            idx = self.add(T(t), a, tr_load(U, sl, t), False, st)
                            mk.setdefault(f"st_P{r}{hh}{'ab'[sub]}", idx)
                            mk.setdefault("remstart", idx)
                            mk[f"Pend{t}"] = idx
        st = self.stage("tail")
        self.use(G["Za"], st)
        self.use(G["Zb"], st)

    def alloc_slots(self):
        order = self.o["order"] or default_order()
        self.items = order
        names = []
        for n in order:
            n = n.split("/")[0]
            if n.startswith("R:"):
                continue
            n = n[2:] if n.startswith("D:") else n
            if not n.startswith("@") and n not in names:
                names.append(n)
        assert sorted(names) == sorted(self.G.keys()), set(self.G) ^ set(names)
        self.order = [self.G[n] for n in names]
        free = [0] * NSLOT
        for g in self.order:
            k = min(range(NSLOT), key=lambda i: free[i])
            g.slot = k
            g.free_req = free[k]
            assert g.free_req <= g.need, (g.name, g.free_req, g.need)
            free[k] = g.last + 1
        self.max_free = max(g.free_req for g in self.order)

    def build_fillers(self):
        mk = self.mark
        F = []

        def put(x, after=None, before=None, alt=None):
            F.append((x if isinstance(x, list) else [x], after, before, alt if self.o["pk"] else None))

        def cvt(d, a, b):
            return valu(f"v_cvt_pk_bf16_f32 v{d}, v{a}, v{b}", rd=[a, b], wr=[d])

        put([salu(f"s_cmp_lg_u32 s{S_LEAD}, 0"), I("s_cbranch_scc0 L_lead", "br"), label("L_leadret"), I("", "markvm", tag="lead")],
            after=self.o.get("lead_at", 30), before=60)
        put(I(f"buffer_load_dword v{V_TAG}, v{V_ZERO}, {srd(SRD_DBG)}, s{S_T4} offen sc1", "vld", rd=[V_ZERO], wr=[V_TAG]), after=118, before=140)
        put([salu(f"s_lshl_b32 s{S_T2}, s{S_O}, 17"), salu(f"s_add_u32 s{S_INBOX}, s{S_T2}, s{S_PARTB}")], after=140, before=200)
        put([valu(f"v_cmp_eq_u32 vcc, 0, v{V_TAG}", rd=[V_TAG]), salu("s_nop 0"), I("s_cbranch_vccnz L_tagspin", "br"), label("L_tagok"),
             valu(f"v_readfirstlane_b32 s{S_TAG}, v{V_TAG}", rd=[V_TAG], sw=[S_TAG])], after=250, before=262)

        for hh in range(2):
            for t in range(4):
                for p in range(8):
                    s = 2 * t + (p >> 2)
                    put(cvt(T(8 + 2 * hh) + 8 * t + p, T(4 * hh + t) + 2 * p, T(4 * hh + t) + 2 * p + 1),
                        after=mk[f"Qend{hh}{t}"], before=min(mk[f"S{hh}use{s}"], mk[f"S{hh}use0"] + 8 * t))

        def maxes(hh):
            for kt in range(4):
                b = T(4 * hh + kt)
                mx = V_MX0 + (kt & 1)
                for p in range(8):
                    if kt < 2 and p == 0:
                        put(valu(f"v_max_f32 v{mx}, v{b}, v{b + 1}", rd=[b, b + 1], wr=[mx]), after=mk[f"Send{hh}{kt}"])
                    else:
                        put(valu(f"v_max3_f32 v{mx}, v{mx}, v{b + 2 * p}, v{b + 2 * p + 1}", rd=[mx, b + 2 * p, b + 2 * p + 1], wr=[mx]),
                            after=mk[f"Send{hh}{kt}"])
            put(valu(f"v_max_f32 v{V_MX0}, v{V_MX0}, v{V_MX1}", rd=[V_MX0, V_MX1], wr=[V_MX0]))
            put(valu(f"v_mov_b32 v{V_MX1}, v{V_MX0}", rd=[V_MX0], wr=[V_MX1]))
            put(I(f"v_permlane32_swap_b32 v{V_MX0}, v{V_MX1}", "perm", rd=[V_MX0, V_MX1], wr=[V_MX0, V_MX1]))
            put(valu(f"v_max_f32 v{V_MX0}, v{V_MX0}, v{V_MX1}", rd=[V_MX0, V_MX1], wr=[V_MX0]))
            put(valu(f"v_mul_f32 v{V_MC}, s{S_SCALE}, v{V_MX0}", rd=[V_MX0], wr=[V_MC]))

        def exps(hh, before):
            vs = [V_SUM0, V_SUM1][hh]
            A0, A1 = V_MX0, V_MX1
            regs = [T(4 * hh) + i for i in range(64)]
            pend = []
            for pr in range(32):
                a, b = regs[2 * pr], regs[2 * pr + 1]
                put([valu(f"v_fma_f32 v{a}, v{a}, s{S_SCALE}, -v{V_MC}", rd=[a, V_MC], wr=[a]),
                     valu(f"v_fma_f32 v{b}, v{b}, s{S_SCALE}, -v{V_MC}", rd=[b, V_MC], wr=[b])], before=before,
                    alt=[valu(f"v_pk_fma_f32 {vr(a, 2)}, {vr(a, 2)}, s[{S_SCALE}:{S_SCALE + 1}], {vr(V_MC, 2)} op_sel_hi:[1,0,0] neg_lo:[0,0,1] neg_hi:[0,0,1]",
                              rd=[a, b, V_MC], wr=[a, b])])
                put(trans(f"v_exp_f32 v{a}, v{a}", rd=[a], wr=[a]), before=before)
                put(trans(f"v_exp_f32 v{b}, v{b}", rd=[b], wr=[b]), before=before)
                for x, al in pend:
                    put(x, before=before, alt=al)
                if pr == 0:
                    pend = [([valu(f"v_mov_b32 v{A0}, v{a}", rd=[a], wr=[A0]), valu(f"v_mov_b32 v{A1}, v{b}", rd=[b], wr=[A1])], None)]
                else:
                    pend = [([valu(f"v_add_f32 v{A0}, v{A0}, v{a}", rd=[A0, a], wr=[A0]),
                              valu(f"v_add_f32 v{A1}, v{A1}, v{b}", rd=[A1, b], wr=[A1])],
                             [valu(f"v_pk_add_f32 {vr(A0, 2)}, {vr(A0, 2)}, {vr(a, 2)}", rd=[A0, A1, a, b], wr=[A0, A1])])]
                pend.append((cvt(T(8 + 2 * hh) + pr, a, b), None))
            for x, al in pend:
                put(x, before=before, alt=al)
            put(valu(f"v_add_f32 v{vs}, v{A0}, v{A1}", rd=[A0, A1], wr=[vs]))
            put(valu(f"v_mov_b32 v{V_TMP0}, v{vs}", rd=[vs], wr=[V_TMP0]))
            put(I(f"v_permlane32_swap_b32 v{vs}, v{V_TMP0}", "perm", rd=[vs, V_TMP0], wr=[vs, V_TMP0]))
            put(valu(f"v_add_f32 v{vs}, v{vs}, v{V_TMP0}", rd=[vs, V_TMP0], wr=[vs]))
            put(trans(f"v_rcp_f32 v{vs}, v{vs}", rd=[vs], wr=[vs]))

        def norm(hh):
            ri = [V_RINV0, V_RINV1][hh]
            dst = [T(8), T(4)][hh]
            for s in range(8):
                dt = s >> 1
                before = mk["own0use0"] if hh == 0 else min(mk[f"own1use{s}"], mk["st_L80"] + self.o["n1_start"] + self.o["n1_step"] * s)
                for p in range(4):
                    a = T(4 * hh) + 8 * s + 2 * p
                    put([valu(f"v_mul_f32 v{a}, v{a}, v{ri}", rd=[a, ri], wr=[a]),
                         valu(f"v_mul_f32 v{a + 1}, v{a + 1}, v{ri}", rd=[a + 1, ri], wr=[a + 1])], after=mk[f"PVend{hh}{dt}"], before=before,
                        alt=[valu(f"v_pk_mul_f32 {vr(a, 2)}, {vr(a, 2)}, {vr(ri, 2)} op_sel_hi:[1,0]", rd=[a, a + 1, ri], wr=[a, a + 1])])
                for p in range(4):
                    a = T(4 * hh) + 8 * s + 2 * p
                    put(cvt(dst + 4 * s + p, a, a + 1), before=before)
                put([salu(f"s_add_u32 s{S_T0}, s{S_OST}, {hh * 32768 + s * 4096}"),
                     I(f"buffer_store_dwordx4 {vr(dst + 4 * s, 4)}, v{V_LIN}, {srd(SRD_WS)}, s{S_T0} offen{self.o['ost_mod']}", "vst",
                       rd=rng(dst + 4 * s, 4) + [V_LIN], tag=f"O{hh}")], before=(before if hh == 1 else None))
                if hh == 1 and s == self.o["e1_pos"] and not self.o["early0"]:
                    flag(1, "O0", None)

        def flag(e, tag, at):
            put([I("", "stamp", tag=f"pre{e}"), I("", "waitvm", tag=tag), I("", "stamp", tag=f"fl{e}"), salu(f"s_add_u32 s{S_T1}, s{S_TAG}, {e}"), valu(f"v_mov_b32 v{V_FV}, s{S_T1}", wr=[V_FV]),
                 salu("s_mov_b64 exec, 1")] +
                ([salu(f"s_add_u32 s{S_T1}, s{S_FLAGA}, {WS_FLAGS2}"),
                  I(f"buffer_store_dword v{V_FV}, v{V_ZERO}, {srd(SRD_WS)}, s{S_T1} offen", "vst", rd=[V_FV, V_ZERO])] if e < 3 and self.o["dual_flag"] else []) +
                [I(f"buffer_store_dword v{V_FV}, v{V_ZERO}, {srd(SRD_WS)}, s{S_FLAGA} offen sc1", "vst", rd=[V_FV, V_ZERO], tag=f"flag{e}"),
                 salu("s_mov_b64 exec, -1")], after=at)

        maxes(0)
        exps(0, mk["PVstart0"])
        if self.o["early0"]:
            n0 = len(F)
            maxes(1)
            exps(1, mk["PVstart1"])
            tail = F[n0 + self.o["e0_split"]:]
            del F[n0 + self.o["e0_split"]:]
            norm(0)
            k = self.o["e1_item"]
            F.extend(tail[:k])
            flag(1, "O0", None)
            F.extend(tail[k:])
            norm(1)
        else:
            maxes(1)
            exps(1, mk["PVstart1"])
            norm(0)
            norm(1)
        flag(2, "O1", mk["own1use0"] + self.o["e2_at"])
        for qd in range(4):
            d = T(4) + 4 * qd
            for t in range(2):
                for p in range(2):
                    a = T(10 + t) + 4 * qd + 2 * p
                    put(cvt(d + 2 * t + p, a, a + 1), after=mk[f"L8end1{t}"])
            put([salu(f"s_xor_b32 s{S_T0}, s{S_O}, {qd}"), salu(f"s_lshl_b32 s{S_T0}, s{S_T0}, 16"),
                 salu(f"s_add_u32 s{S_T0}, s{S_T0}, s{S_L8B}"),
                 I(f"buffer_store_dwordx4 {vr(d, 4)}, v{V_LIN}, {srd(SRD_WS)}, s{S_T0} offen sc1", "vst",
                   rd=rng(d, 4) + [V_LIN], tag="L8")])
        flag(3, "L8", mk["remstart"] + self.o["e3_at"])
        r0 = mk["remstart"]
        put(valu(f"v_mbcnt_lo_u32_b32 v{V_TMP0}, -1, 0", wr=[V_TMP0]), after=r0 + self.o['own_at'])
        put(valu(f"v_and_b32 v{V_TMP0}, 3, v{V_TMP0}", rd=[V_TMP0], wr=[V_TMP0]))
        put(valu(f"v_lshlrev_b32 v{V_TMP0}, 11, v{V_TMP0}", rd=[V_TMP0], wr=[V_TMP0]))
        put(valu(f"v_xor_b32 v{V_TMP0}, s{S_FLAGA}, v{V_TMP0}", rd=[V_TMP0], wr=[V_TMP0]))
        put(I(f"buffer_load_dword v{V_TMP1}, v{V_TMP0}, {srd(SRD_WS)}, 0 offen offset:4 sc1", "vld", rd=[V_TMP0], wr=[V_TMP1]))
        put([salu(f"s_add_u32 s{S_T1}, s{S_TAG}, 1"), valu(f"v_subrev_u32 v{V_TMP1}, s{S_T1}, v{V_TMP1}", rd=[V_TMP1], wr=[V_TMP1]),
             valu(f"v_cmp_lt_u32 vcc, 6, v{V_TMP1}", rd=[V_TMP1]), salu("s_nop 0"), I("s_cbranch_vccnz L_ownspin", "br"), label("L_ownok")],
            after=r0 + self.o['own_at'] + 40)
        self.F = F
        self.A = {}
        self.subs = ""

    def compute_stream(self, S):
        o = self.o
        ms = self.ms
        la = o["la"]
        n = len(ms)
        loads_at = {}
        seen = set()
        for m, x in enumerate(ms):
            for ld in (x.b, x.a):
                if isinstance(ld, Load) and id(ld) not in seen:
                    seen.add(id(ld))
                    loads_at.setdefault(max(m - la, -1), []).append((ld, x.stage))
        first_pos = {}
        last_load = {}
        for pos in sorted(loads_at):
            for ld, st in loads_at[pos]:
                first_pos.setdefault(st, pos)
                last_load[st] = id(ld)
        flag_at = {}
        for st, pos in first_pos.items():
            if self.stages[st]["new"]:
                flag_at.setdefault(max(pos - 3, -1), []).append(st)
        ai = bi = pi = 0
        bases = {}
        checked = set()
        self.spins = []
        F = list(self.F)
        fi = 0
        stamp_at = {}
        if o["stamps"]:
            for st, sd in enumerate(self.stages[:-1]):
                m0 = min(i for i, x in enumerate(ms) if x.stage == st)
                if o.get("only") is None or sd["name"] in o["only"]:
                    stamp_at[m0] = sd["name"]

        def flagread(st):
            S.emit(I(f"ds_read_b32 v{V_FLAG}, v{V_FA} offset:{LDS_READY + 32 * st}", "ldsr", rd=[V_FA], wr=[V_FLAG]))

        first_alias = {}
        have_flag = set()

        def do_loads(pos, only_flags=False):
            nonlocal ai, bi, pi
            c = 0
            for st in flag_at.get(pos, []):
                flagread(st)
                have_flag.add(st)
                c += 1
            for ld, st in loads_at.get(pos, []):
                if st not in checked:
                    checked.add(st)
                    new = self.stages[st]["new"]
                    if new and not o.get('noready'):
                        assert st in have_flag
                        cnt = 1
                        S.emit(valu(f"v_cmp_ne_u32 vcc, {cnt}, v{V_FLAG}", rd=[V_FLAG]))
                        S.emit(salu("s_nop 0"))
                        S.emit(I(f"s_cbranch_vccnz L_spin{st}", "br"))
                        S.emit(label(f"L_back{st}"))
                        self.spins.append((st, cnt))
                        c += 3
                g = ld.group
                if g.addr + max(ld.offs) + 4096 <= 65536 and False:
                    breg, add = ld.pat, g.addr
                else:
                    key = (g.name, ld.pat)
                    if key not in bases:
                        r = V_POOL + pi % NPOOL
                        pi += 1
                        for k2 in [k2 for k2, v in bases.items() if v == r]:
                            assert self.G[k2[0]].last < st or self.G[k2[0]].last == -1, ("base pool overlap", k2, key)
                            del bases[k2]
                        bases[key] = r
                        S.emit(valu(f"v_add_u32 v{r}, {g.addr}, v{ld.pat}", rd=[ld.pat], wr=[r]))
                        c += 1
                    breg, add = bases[key], 0
                if ld.ring == "A":
                    ld.reg = ARING + 4 * (ai % NA)
                    ai += 1
                else:
                    ld.reg = BRING + 4 * (bi % NB)
                    bi += 1
                if len(ld.offs) == 2:
                    for q, off in enumerate(ld.offs):
                        S.emit(I(f"ds_read_b64_tr_b16 {vr(ld.reg + 2 * q, 2)}, v{breg} offset:{add + off}", "ldsr", rd=[breg], wr=rng(ld.reg + 2 * q, 2)))
                        c += 1
                else:
                    S.emit(I(f"ds_read_b128 {vr(ld.reg, 4)}, v{breg} offset:{add + ld.offs[0]}", "ldsr", rd=[breg], wr=rng(ld.reg, 4)))
                    c += 1
            return c

        def emit_item(k, exposed=False):
            c = 0
            for x in (F[k][3] if exposed and F[k][3] else F[k][0]):
                if x.kind == "stamp":
                    if o["stamps"] and o.get("fstamps"):
                        self.stamp(S, x.tag)
                    continue
                S.emit(x)
                c += x.cost
            return c

        def forced(m):
            last = -1
            for k in range(fi, len(F)):
                if F[k][2] is not None and F[k][2] <= m:
                    last = k
            return last

        stage_first = {}
        for m, x in enumerate(ms):
            stage_first.setdefault(x.stage, m)
        deferred = []
        defer_until = None
        do_loads(-1)
        for m, x in enumerate(ms):
            lastforce = forced(m)
            while fi <= lastforce:
                assert F[fi][1] is None or F[fi][1] < m, (F[fi][0][0].text, F[fi][1], m)
                if defer_until == m and lastforce - fi < o.get("late_lead", 30):
                    for pos in deferred:
                        do_loads(pos, only_flags=False)
                    deferred, defer_until = [], None
                emit_item(fi, True)
                fi += 1
            if defer_until == m:
                for pos in deferred:
                    do_loads(pos)
                deferred, defer_until = [], None
            if o.get("mrange") and o["mrange"][0] <= m < o["mrange"][1] and (m - o["mrange"][0]) % o["mrange"][2] == 0:
                self.stamp(S, f"m{m}")
            if m in stamp_at:
                self.stamp(S, stamp_at[m])
            if o.get("amp") == self.stages[x.stage]["name"] and stage_first[x.stage] == m:
                self.ampstamp(S)
            a = x.a.reg if isinstance(x.a, Load) else x.a
            b = x.b.reg if isinstance(x.b, Load) else x.b
            if o["pairwait"] and m % 2 == 0 and m + 1 < n:
                extra = []
                for ld in (ms[m + 1].a, ms[m + 1].b):
                    if isinstance(ld, Load) and ld.reg is not None:
                        extra += rng(ld.reg, 4)
                extra += rng(a, 4) + rng(b, 4)
                S.wait(lg=S._need(S.lg, set(extra)))
            S.emit(mfma(x.d, a, b, x.c0))
            c = 1
            if (m + 1 == n or ms[m + 1].stage != x.stage) and x.stage < self.max_free:
                S.emit(I(f"global_load_lds_dword v{V_ZERO}, s[{S_TAB}:{S_TAB + 1}] offset:{4 * (63 - x.stage)}", "vld", rd=[V_ZERO]))
                c += 1
            if o["late"] and defer_until is None:
                for st in flag_at.get(m, []):
                    m0 = stage_first[st]
                    if forced(m0) - fi + 1 > 3 * (m0 - m) + 24:
                        defer_until = m0
                        defer_stage = st
            if defer_until is not None:
                cur = [e for e in loads_at.get(m, []) if e[1] < defer_stage]
                fut = [e for e in loads_at.get(m, []) if e[1] >= defer_stage]
                key = ("d", m)
                loads_at[key] = fut
                loads_at[m] = cur
                if m in flag_at:
                    flag_at[key] = flag_at.pop(m)
                first_alias[key] = m
                deferred.append(key)
            c += do_loads(m)
            for x in self.A.get(m, []):
                S.emit(x)
                c += x.cost
            while fi < len(F) and c < o["budget"]:
                after = F[fi][1]
                if after is not None and after + 2 > m:
                    break
                c += emit_item(fi)
                fi += 1
        while fi < len(F):
            emit_item(fi)
            fi += 1

    def stamp(self, S, name):
        if self.o.get("tiny"):
            return
        k = len(self.cnames)
        self.cnames.append(name)
        if self.o.get("lazy"):
            D = 5
            if k >= D:
                S.raw(f"v_writelane_b32 v{V_ST}, s{S_STAMP + 2 * ((k - D) % 6)}, {k - D}")
            S.raw(f"{self.tm} s[{S_STAMP + 2 * (k % 6)}:{S_STAMP + 2 * (k % 6) + 1}]")
            if name == "polled":
                S.raw("s_waitcnt lgkmcnt(0)")
                for q in range(max(0, k - D + 1), k + 1):
                    S.raw(f"v_writelane_b32 v{V_ST}, s{S_STAMP + 2 * (q % 6)}, {q}")
            return
        S.emit(I("", "waitlg0"))
        if self.o.get("dual"):
            self.cnames.append(name + "_c")
            S.raw(f"s_memtime s[{S_STAMP + 2}:{S_STAMP + 3}]")
            S.raw(f"s_memrealtime s[{S_STAMP}:{S_STAMP + 1}]")
            S.raw("s_waitcnt lgkmcnt(0)")
            S.raw(f"v_writelane_b32 v{V_ST}, s{S_STAMP}, {k}")
            S.raw(f"v_writelane_b32 v{V_ST}, s{S_STAMP + 2}, {k + 1}")
            return
        S.raw(f"{self.tm} s[{S_STAMP}:{S_STAMP + 1}]")
        S.raw("s_waitcnt lgkmcnt(0)")
        S.raw(f"v_writelane_b32 v{V_ST}, s{S_STAMP}, {k}")

    def ampstamp(self, S):
        S.emit(I("", "waitlg0"))
        S.raw("s_memrealtime s[74:75]")
        S.raw("s_waitcnt lgkmcnt(0)")

    def lstamp(self, name):
        if self.o.get("tiny"):
            return ""
        k = len(self.lnames)
        self.lnames.append(name)
        return f"{self.tm} s[{S_STAMP}:{S_STAMP + 1}]\ns_waitcnt lgkmcnt(0)\nv_writelane_b32 v{240 + k // 64}, s{S_STAMP}, {k % 64}\n"

    def spin_guard(self, back):
        return (f"s_add_u32 s{S_SPIN}, s{S_SPIN}, 1\ns_cmp_gt_u32 s{S_SPIN}, {self.o['spin_limit']}\n"
                f"s_cbranch_scc1 {back}\n")

    SIZES = {SRD_X: 1179648, SRD_K: 8388608, SRD_V: 8388608, SRD_WQ: 4718592, SRD_WO: 4718592,
             SRD_WS: 268435456, SRD_OUT: 2359296, SRD_DBG: 256}
    LAND = {SRD_X: 60, SRD_K: 62, SRD_V: 64, SRD_WQ: 66, SRD_OUT: 68, SRD_DBG: 70}

    def srd_build(self, regs):
        t = ""
        for r in regs:
            if r in self.LAND:
                t += f"s_mov_b64 s[{r}:{r + 1}], s[{self.LAND[r]}:{self.LAND[r] + 1}]\n"
            t += f"s_mov_b32 s{r + 2}, {self.SIZES[r]}\ns_mov_b32 s{r + 3}, 0x20000\n"
        return t

    def ids(self):
        return f"""s_bfe_u32 s{S_P}, s2, 0x10002
s_lshl_b32 s{S_COMP}, s{S_P}, 3
s_add_u32 s{S_COMP}, s{S_COMP}, s{S_B}
s_lshl_b32 s{S_CID}, s{S_COMP}, 2
s_add_u32 s{S_CID}, s{S_CID}, s{S_O}
s_lshl_b32 s{S_CID}, s{S_CID}, 2
s_add_u32 s{S_CID}, s{S_CID}, s{S_J}
s_mov_b32 s{S_SPIN}, 0
"""

    def prologue(self):
        t = f"s_memrealtime s[72:73]\n" if (self.o["stamps"] or self.o.get("amp")) else ""
        t += f"""s_cmp_ge_u32 s2, 256
s_cbranch_scc1 L_end
s_and_b32 s{S_T0}, s2, 4
s_mul_i32 s{S_T0}, s{S_T0}, 10
s_add_u32 s{S_T2}, s0, s{S_T0}
s_addc_u32 s{S_T3}, s1, 0
s_load_dwordx4 s[60:63], s[{S_T2}:{S_T3}], 0
s_load_dwordx4 s[64:67], s[{S_T2}:{S_T3}], 16
s_load_dwordx2 s[{SRD_WO}:{SRD_WO + 1}], s[{S_T2}:{S_T3}], 32
s_load_dwordx4 s[68:71], s[0:1], 80
s_load_dwordx2 s[{SRD_WS}:{SRD_WS + 1}], s[0:1], 96
v_lshrrev_b32 v1, 6, v0
v_and_b32 v0, 63, v0
s_getpc_b64 s[{S_TAB}:{S_TAB + 1}]
L_pc:
v_readfirstlane_b32 s{S_WAVE}, v1
s_and_b32 s{S_O}, s2, 3
s_lshr_b32 s{S_B}, s2, 5
s_bfe_u32 s{S_J}, s2, 0x20003
s_cmp_lg_u32 s{S_WAVE}, 0
s_cbranch_scc1 L_notouch
s_bfe_u32 s{S_T0}, s2, 0x30003
s_mul_i32 s{S_T0}, s{S_T0}, (L_codeend-L_pc+1023)/1024
v_add_u32 v1, s{S_T0}, v0
v_min_u32 v1, (L_codeend-L_pc-4)/128, v1
v_lshlrev_b32 v1, 7, v1
global_load_dword v{V_FV}, v1, s[{S_TAB}:{S_TAB + 1}]
L_notouch:
s_add_u32 s{S_TAB}, s{S_TAB}, L_ones-L_pc
s_addc_u32 s{S_TAB + 1}, s{S_TAB + 1}, 0
s_and_b32 s{S_W}, s{S_WAVE}, 3
; clear the hand-off words in LDS
v_mov_b32 v22, 0
v_mov_b32 v23, 0
s_lshl_b32 s{S_T0}, s{S_WAVE}, 9
v_lshl_add_u32 v24, v0, 3, s{S_T0}
ds_write_b64 v24, v[22:23]
s_cmp_ge_u32 s{S_WAVE}, 4
s_cbranch_scc1 L_loader
s_waitcnt lgkmcnt(0)
{"s_memrealtime s[76:77]" if self.o["stamps"] else ""}
s_barrier
s_branch L_compute
L_loader:
"""
        return t

    def compute_prologue(self):
        t = f"""s_setprio {self.o.get('cprio', 3)}
v_mov_b32 v{V_ZERO}, 0
s_lshl_b32 s{S_T0}, s{S_W}, 10
v_lshlrev_b32 v6, 4, v0
v_add_u32 v{V_LIN}, s{S_T0}, v6
; patterns
v_and_b32 v1, 31, v0
v_lshrrev_b32 v2, 5, v0
v_bfe_u32 v3, v0, 2, 2
v_and_b32 v4, 1, v0
v_lshlrev_b32 v4, 1, v4
v_bfe_u32 v5, v0, 1, 1
v_or_b32 v4, v4, v5
v_bfe_u32 v5, v0, 4, 1
v_lshl_add_u32 v4, v5, 2, v4
v_lshlrev_b32 v4, 3, v4
v_lshl_add_u32 v4, v3, 6, v4
v_lshl_add_u32 v{V_TR}, v2, 11, v4
v_lshl_add_u32 v{V_TR8}, v2, 10, v4
s_lshl_b32 s{S_T0}, s{S_O}, 3
v_xor_b32 v5, s{S_T0}, v1
v_lshrrev_b32 v6, 3, v5
v_lshlrev_b32 v6, 10, v6
v_and_b32 v7, 7, v5
v_lshl_add_u32 v6, v7, 6, v6
v_bfe_u32 v7, v5, 2, 2
v_xor_b32 v7, v7, v2
v_lshl_add_u32 v6, v7, 4, v6
s_lshl_b32 s{S_T0}, s{S_W}, 12
v_add_u32 v{V_XB0}, s{S_T0}, v6
v_xor_b32 v{V_XB1}, 32, v{V_XB0}
v_and_b32 v5, 19, v1
v_bfe_u32 v6, v1, 2, 1
v_lshl_add_u32 v5, v6, 3, v5
v_bfe_u32 v6, v1, 3, 1
v_lshl_add_u32 v5, v6, 2, v5
; K pattern
v_lshrrev_b32 v6, 2, v5
v_lshlrev_b32 v7, 10, v6
v_and_b32 v8, 3, v5
v_lshl_add_u32 v7, v8, 6, v7
v_and_b32 v6, 3, v6
v_xor_b32 v6, v6, v2
v_lshl_add_u32 v{V_KB0}, v6, 4, v7
v_xor_b32 v{V_KB1}, 32, v{V_KB0}
v_mul_u32_u24 v6, {4 * 2304}, v2
v_lshl_add_u32 v{V_OUTA}, v5, 1, v6
; ready-flag read pattern and done-flag base
v_and_b32 v6, 7, v0
v_lshlrev_b32 v{V_FA}, 2, v6
s_mul_i32 s{S_T0}, s{S_W}, 516
s_add_u32 m0, s{S_T0}, {LDS_DONE}
s_mov_b32 s{S_SCALE}, 0x3e0293ee
"""
        t += self.ids() + self.srd_build([SRD_WS, SRD_OUT, SRD_DBG])
        t += f"""s_lshl_b32 s{S_OST}, s{S_CID}, 16
s_add_u32 s{S_OST}, s{S_OST}, {WS_O}
s_and_b32 s{S_OGB}, s{S_OST}, 0xfffcffff
s_lshl_b32 s{S_FLAGA}, s{S_CID}, 2
s_add_u32 s{S_FLAGA}, s{S_FLAGA}, s{S_W}
s_lshl_b32 s{S_FLAGA}, s{S_FLAGA}, 7
s_lshl_b32 s{S_PARTB}, s{S_COMP}, 4
s_add_u32 s{S_PARTB}, s{S_PARTB}, s{S_J}
s_lshl_b32 s{S_PARTB}, s{S_PARTB}, 15
s_add_u32 s{S_PARTB}, s{S_PARTB}, {WS_PART}
; l8 inbox for owner (comp, o^qd, w): ((comp*16 + w)*16 + (o*4+j))*1024 + (o^qd)*65536 - w*1024
s_lshl_b32 s{S_L8B}, s{S_COMP}, 4
s_add_u32 s{S_L8B}, s{S_L8B}, s{S_W}
s_lshl_b32 s{S_L8B}, s{S_L8B}, 4
s_and_b32 s{S_T0}, s{S_CID}, 15
s_add_u32 s{S_L8B}, s{S_L8B}, s{S_T0}
s_sub_u32 s{S_L8B}, s{S_L8B}, s{S_W}
s_lshl_b32 s{S_L8B}, s{S_L8B}, 10
s_add_u32 s{S_L8B}, s{S_L8B}, {WS_L8}
s_lshl_b32 s{S_OUTB}, s{S_B}, 2
s_add_u32 s{S_OUTB}, s{S_OUTB}, s{S_W}
s_lshl_b32 s{S_OUTB}, s{S_OUTB}, 2
s_add_u32 s{S_OUTB}, s{S_OUTB}, s{S_O}
s_mul_i32 s{S_OUTB}, s{S_OUTB}, {8 * 2304}
s_mul_i32 s{S_T0}, s{S_P}, 1152
s_add_u32 s{S_OUTB}, s{S_OUTB}, s{S_T0}
s_lshl_b32 s{S_T0}, s{S_J}, 8
s_add_u32 s{S_OUTB}, s{S_OUTB}, s{S_T0}
s_lshl_b32 s{S_T4}, s{S_COMP}, 2
{self.pretouch()}; leader wave: fetch the hand-off words an earlier launch left (the tag is chosen from them a little later)
s_and_b32 s{S_LEAD}, s{S_CID}, 15
s_or_b32 s{S_LEAD}, s{S_LEAD}, s{S_WAVE}
s_cmp_lg_u32 s{S_LEAD}, 0
s_cbranch_scc1 L_noscan
v_lshlrev_b32 v1, 7, v0
s_lshl_b32 s{S_T0}, s{S_COMP}, 13
buffer_load_dwordx2 v[{V_MX0}:{V_MX1}], v1, {srd(SRD_WS)}, s{S_T0} offen sc1
s_add_u32 s{S_T0}, s{S_T0}, {WS_FLAGS2}
buffer_load_dword v{V_MC}, v1, {srd(SRD_WS)}, s{S_T0} offen sc1
L_noscan:
"""
        return t

    def pretouch(self):
        m = self.o.get("pre", "")
        if not m:
            return ""
        t = ""
        d = V_FV
        if "w" in m:
            t += f"""s_cmp_lg_u32 s{S_WAVE}, 1
s_cbranch_scc1 L_pt1
v_and_b32 v1, 3, v0
v_lshlrev_b32 v2, 17, v1
v_add_u32 v2, s{S_PARTB}, v2
v_lshlrev_b32 v3, 16, v1
v_add_u32 v3, s{S_L8B}, v3
v_mov_b32 v4, s{S_OST}
v_cmp_gt_u32 vcc, 4, v0
s_nop 1
v_cndmask_b32 v4, v4, v2, vcc
v_lshrrev_b32 v5, 2, v0
v_cmp_eq_u32 vcc, 1, v5
s_nop 1
v_cndmask_b32 v4, v4, v3, vcc
s_mov_b64 exec, 0x1ff
buffer_load_dword v{d}, v4, {srd(SRD_WS)}, 0 offen sc1
s_mov_b64 exec, 1
buffer_load_dword v{d}, v{V_ZERO}, {srd(SRD_OUT)}, s{S_OUTB} offen
s_mov_b64 exec, -1
L_pt1:
"""
        if "s" in m:
            t += f"""s_mov_b64 exec, 1
buffer_store_dword v{V_ZERO}, v{V_LIN}, {srd(SRD_WS)}, s{S_OST} offen sc1
s_mov_b64 exec, -1
"""
        if "i" in m:
            t += f"""s_cmp_lg_u32 s{S_WAVE}, 2
s_cbranch_scc1 L_pt2
""" + self.srd_build([SRD_K, SRD_V, SRD_WO]) + f"""s_lshl_b32 s{S_T0}, s{S_B}, 5
s_lshl_b32 s{S_T1}, s{S_O}, 3
s_add_u32 s{S_T0}, s{S_T0}, s{S_T1}
s_lshl_b32 s{S_T1}, s{S_J}, 1
s_add_u32 s{S_T0}, s{S_T0}, s{S_T1}
s_lshl_b32 s{S_T0}, s{S_T0}, 15
s_mul_i32 s{S_T1}, s{S_O}, {1024 * 1152}
v_mul_u32_u24 v1, {1024 * 1152 - 128}, v0
s_mov_b64 exec, 1
buffer_load_dword v{d}, v{V_ZERO}, {srd(SRD_K)}, s{S_T0} offen nt
buffer_load_dword v{d}, v{V_ZERO}, {srd(SRD_V)}, s{S_T0} offen nt
s_mov_b64 exec, 3
buffer_load_dword v{d}, v1, {srd(SRD_WO)}, s{S_T1} offen
s_mov_b64 exec, -1
L_pt2:
"""
        return t

    def compute_tail(self, S):
        o = self.o
        if o["stamps"]:
            self.stamp(S, "end")
        if o.get("amp") == "end":
            self.ampstamp(S)
        for qd in (1, 2, 3):
            d = T(6) + 8 * (qd - 1)
            S.emit(salu(f"s_xor_b32 s{S_T0}, s{S_O}, {qd}"))
            S.emit(salu(f"s_lshl_b32 s{S_T0}, s{S_T0}, 17"))
            S.emit(salu(f"s_add_u32 s{S_T0}, s{S_T0}, s{S_PARTB}"))
            S.emit(salu(f"s_add_u32 s{S_T0}, s{S_T0}, {qd * 8192}"))
            S.emit(salu(f"s_add_u32 s{S_T1}, s{S_T0}, 4096"))
            for t in range(4):
                for p in range(2):
                    a = T(t) + 4 * qd + 2 * p
                    S.emit(valu(f"v_cvt_pk_bf16_f32 v{d + 2 * t + p}, v{a}, v{a + 1}", rd=[a, a + 1], wr=[d + 2 * t + p]))
                for p in range(2):
                    S.emit(valu(f"v_xor_b32 v{d + 2 * t + p}, s{S_TAG}, v{d + 2 * t + p}", rd=[d + 2 * t + p], wr=[d + 2 * t + p]))
                if t & 1:
                    S.emit(I(f"buffer_store_dwordx4 {vr(d + 2 * t - 2, 4)}, v{V_LIN}, {srd(SRD_WS)}, s{S_T0 + (t >> 1)} offen{o['pst_mod']}", "vst", rd=rng(d + 2 * t - 2, 4)))
        if o["stamps"]:
            self.stamp(S, "sent")
        S.raw(f"s_mov_b32 s{S_GOT}, 0")
        zst = len(self.stages) - 1
        S.out.append("L_zspin:")
        S.raw(f"ds_read_b32 v{V_FLAG}, v{V_FA} offset:{LDS_READY + 32 * zst}")
        S.raw(f"v_add_u32 v{V_POOL}, {self.G['Za'].addr}, v{V_LIN}")
        S.raw(f"v_add_u32 v{V_POOL + 1}, {self.G['Zb'].addr}, v{V_LIN}")
        S.raw("s_waitcnt lgkmcnt(0)")
        S.raw(f"v_cmp_ne_u32 vcc, 1, v{V_FLAG}")
        S.raw("s_nop 1")
        S.raw("s_cbranch_vccz L_zok")
        S.out.append(self.spin_guard("L_zok") + "s_branch L_zspin")
        S.out.append("L_zok:")
        for k in range(6):
            S.raw(f"ds_read_b128 {vr(V_STALE + 4 * k, 4)}, v{V_POOL + k // 4} offset:{(k % 4) * 4096}")
        S.out.append("L_fpoll:")
        for k in range(6):
            S.raw(f"s_add_u32 s{S_T1}, s{S_INBOX}, {8192 + k * 4096}")
            S.raw(f"buffer_load_dwordx4 {vr(T(8) + 4 * k, 4)}, v{V_LIN}, {srd(SRD_WS)}, s{S_T1} offen{o['pld_mod']}")
        X = ARING
        for k in range(6):
            d = T(8) + 4 * k
            S.raw(f"s_waitcnt vmcnt({5 - k}) lgkmcnt(0)")
            for q in range(4):
                S.raw(f"v_xor_b32 v{X + q}, v{d + q}, v{V_STALE + 4 * k + q}")
            if k == 0:
                S.raw(f"v_min_u32 v{X + 4}, v{X}, v{X + 1}")
            else:
                S.raw(f"v_min3_u32 v{X + 4}, v{X + 4}, v{X}, v{X + 1}")
            S.raw(f"v_min3_u32 v{X + 4}, v{X + 4}, v{X + 2}, v{X + 3}")
        S.raw(f"v_cmp_eq_u32 vcc, 0, v{X + 4}")
        S.raw(f"s_cmp_lg_u32 s{S_GOT}, 0")
        S.raw("s_cbranch_scc1 L_fsent")
        S.raw(f"s_add_u32 s{S_T1}, s{S_TAG}, 4")
        S.raw(f"v_mov_b32 v{V_FV}, s{S_T1}")
        S.raw("s_mov_b64 exec, 1")
        S.raw(f"buffer_store_dword v{V_FV}, v{V_ZERO}, {srd(SRD_WS)}, s{S_FLAGA} offen sc1")
        S.raw("s_mov_b64 exec, -1")
        S.out.append("L_fsent:")
        S.raw("s_cbranch_vccz L_fpollok")
        S.raw(f"s_bitcmp1_b32 s{S_GOT}, 31")
        S.raw("s_cbranch_scc1 L_fpollok")
        S.raw(f"s_add_u32 s{S_GOT}, s{S_GOT}, 1")
        S.raw(f"s_cmp_lt_u32 s{S_GOT}, 48")
        S.raw("s_cbranch_scc1 L_fpoll")
        S.raw("s_branch L_fslow")
        S.out.append("L_fpollok:")
        S.vm = []
        if o["stamps"]:
            self.stamp(S, "polled")
        if o.get("amp") == "polled":
            self.ampstamp(S)
        for qd in (1, 2, 3):
            for t in range(4):
                for p in range(2):
                    s = T(8) + 8 * (qd - 1) + 2 * t + p
                    a = T(t) + 2 * p
                    S.emit(valu(f"v_xor_b32 v{s}, s{S_TAG}, v{s}", rd=[s], wr=[s]))
                    S.emit(valu(f"v_lshlrev_b32 v{X}, 16, v{s}", rd=[s], wr=[X]))
                    S.emit(valu(f"v_and_b32 v{X + 1}, 0xffff0000, v{s}", rd=[s], wr=[X + 1]))
                    S.emit(valu(f"v_pk_add_f32 {vr(a, 2)}, {vr(a, 2)}, {vr(X, 2)}", rd=[a, a + 1, X, X + 1], wr=[a, a + 1]))
        for p in range(2):
            S.emit(salu(f"s_add_u32 s{S_T0}, s{S_OUTB}, {2 * p * 2304}"))
            S.emit(salu(f"s_add_u32 s{S_T1}, s{S_OUTB}, {(2 * p + 1) * 2304}"))
            for t in range(4):
                a = T(t) + 2 * p
                d = T(4) + 4 * p + t
                S.emit(valu(f"v_cvt_pk_bf16_f32 v{d}, v{a}, v{a + 1}", rd=[a, a + 1], wr=[d]))
                S.emit(I(f"buffer_store_short v{d}, v{V_OUTA}, {srd(SRD_OUT)}, s{S_T0} offen offset:{t * 64}{o['out_mod']}", "vst", rd=[d]))
                S.emit(I(f"buffer_store_short_d16_hi v{d}, v{V_OUTA}, {srd(SRD_OUT)}, s{S_T1} offen offset:{t * 64}{o['out_mod']}", "vst", rd=[d]))

    def stamp_out(self, regs, idx):
        t = f"s_waitcnt vmcnt(0) lgkmcnt(0)\n{self.tm} s[{S_STAMP}:{S_STAMP + 1}]\ns_memrealtime s[{S_STAMP + 2}:{S_STAMP + 3}]\ns_getreg_b32 s{S_STAMP + 4}, hwreg(HW_REG_XCC_ID)\ns_getreg_b32 s{S_STAMP + 5}, hwreg(HW_REG_HW_ID)\ns_waitcnt lgkmcnt(0)\n"
        r = regs[-1]
        t += f"v_writelane_b32 v{regs[idx // 64]}, s{S_STAMP}, {idx % 64}\nv_writelane_b32 v{r}, s76, 59\nv_writelane_b32 v{r}, s72, 60\nv_writelane_b32 v{r}, s{S_STAMP + 2}, 61\nv_writelane_b32 v{r}, s{S_STAMP + 4}, 62\nv_writelane_b32 v{r}, s{S_STAMP + 5}, 63\n"
        t += f"s_lshl_b32 s{S_T0}, s2, 3\ns_add_u32 s{S_T0}, s{S_T0}, s{S_WAVE}\ns_lshl_b32 s{S_T0}, s{S_T0}, 9\ns_add_u32 s{S_T0}, s{S_T0}, {WS_STAMP}\n"
        t += "v_mbcnt_lo_u32_b32 v1, -1, 0\nv_mbcnt_hi_u32_b32 v1, -1, v1\nv_lshlrev_b32 v1, 2, v1\n"
        for k, r in enumerate(regs):
            t += f"buffer_store_dword v{r}, v1, {srd(SRD_WS)}, s{S_T0} offen offset:{256 * k + (256 if len(regs) == 1 else 0)}\n"
        return t

    def loader(self):
        o = self.o
        VX, VW, VV, VK, VU, VE, VL, VDA, VTG, VPOLL, VPA, VT, VZ, VRD, VONE, VPOLL2 = 10, 11, 12, 13, 14, 15, 16, 17, 18, 19, 20, 21, 22, 23, 24, 26
        S_PCNT = 101
        cm = o["common"]
        nrot = 9 - cm
        t = f"""v_bfe_u32 v1, v0, 2, 2
v_and_b32 v2, 3, v0
v_lshrrev_b32 v3, 4, v0
v_lshlrev_b32 v4, 6, v3
v_lshl_add_u32 v4, v2, 4, v4
; wq: r*8192 + t*64 + c*16 + l*32768
s_lshl_b32 s{S_T0}, s{S_W}, 15
v_lshl_add_u32 v{VW}, v1, 13, v4
v_add_u32 v{VW}, s{S_T0}, v{VW}
v_bfe_u32 v5, v0, 2, 3
v_mul_u32_u24 v6, 1152, v5
v_lshrrev_b32 v7, 5, v0
v_lshl_add_u32 v6, v7, 6, v6
v_lshrrev_b32 v7, 2, v5
s_and_b32 s{S_T0}, s{S_W}, 1
s_lshl_b32 s{S_T0}, s{S_T0}, 1
v_or_b32 v7, s{S_T0}, v7
v_xor_b32 v7, v7, v2
v_lshl_add_u32 v6, v7, 4, v6
s_mul_i32 s{S_T0}, s{S_W}, 9216
v_add_u32 v{VX}, s{S_T0}, v6
s_lshl_b32 s{S_L1024}, s{S_W}, 10
s_lshl_b32 s{S_ROT}, s{S_J}, 1
s_add_u32 s{S_ROT}, s{S_ROT}, s{S_B}
s_sub_u32 s{S_T0}, s{S_ROT}, {nrot}
s_cmp_ge_u32 s{S_ROT}, {nrot}
s_cselect_b32 s{S_ROT}, s{S_T0}, s{S_ROT}
"""
        if 0 < nrot < 7:
            t += f"s_sub_u32 s{S_T0}, s{S_ROT}, {nrot}\ns_cmp_ge_u32 s{S_ROT}, {nrot}\ns_cselect_b32 s{S_ROT}, s{S_T0}, s{S_ROT}\n" * (13 // max(nrot, 1))
        t += f"""s_mul_i32 s{S_XB}, s{S_B}, 147456
s_lshl_b32 s{S_T0}, s{S_O}, 3
s_lshl_b32 s{S_T1}, s{S_J}, 1
s_add_u32 s{S_HD}, s{S_T0}, s{S_T1}
s_lshl_b32 s{S_WQB}, s{S_HD}, 8
s_mov_b32 s{SRD_X + 2}, {self.SIZES[SRD_X]}
s_mov_b32 s{SRD_X + 3}, 0x20000
s_mov_b32 s{SRD_WQ + 2}, {self.SIZES[SRD_WQ]}
s_mov_b32 s{SRD_WQ + 3}, 0x20000
s_lshl_b32 s{S_RDY}, s{S_W}, 3
{"s_memrealtime s[76:77]" if self.o["stamps"] else ""}
s_waitcnt lgkmcnt(0)
s_mov_b64 s[{SRD_X}:{SRD_X + 1}], s[60:61]
s_mov_b64 s[{SRD_WQ}:{SRD_WQ + 1}], s[66:67]
"""
        rest = self.ids() + self.srd_build([SRD_K, SRD_V, SRD_WO, SRD_WS, SRD_OUT, SRD_DBG]) + f"""; V: r*256 + t*64 + c*16 + l*1024
v_lshl_add_u32 v{VV}, v1, 8, v4
v_add_u32 v{VV}, s{S_L1024}, v{VV}
; K: same with c^l
s_lshl_b32 s{S_T0}, s{S_W}, 4
v_xor_b32 v{VK}, s{S_T0}, v{VV}
; wo: r*1152 + t*64 + c*16 + l*4608
v_mul_u32_u24 v6, 1152, v1
v_add_u32 v6, v6, v4
s_mul_i32 s{S_T0}, s{S_W}, 4608
v_add_u32 v{VU}, s{S_T0}, v6
; line 8: (4*rg2+r)*1152 + t*64 + c*16 + l*9216
v_lshrrev_b32 v7, 5, v0
v_lshl_add_u32 v7, v7, 2, v1
v_mul_u32_u24 v6, 1152, v7
v_bfe_u32 v7, v0, 4, 1
v_lshl_add_u32 v6, v7, 6, v6
v_lshl_add_u32 v6, v2, 4, v6
s_mul_i32 s{S_T0}, s{S_W}, 9216
v_add_u32 v{VE}, s{S_T0}, v6
; linear
v_lshlrev_b32 v6, 4, v0
v_add_u32 v{VL}, s{S_L1024}, v6
v_mul_u32_u24 v{VDA}, 516, v2
s_lshl_b32 s{S_KVB}, s{S_B}, 5
s_add_u32 s{S_KVB}, s{S_KVB}, s{S_HD}
s_lshl_b32 s{S_KVB}, s{S_KVB}, 15
s_mul_i32 s{S_WOB}, s{S_O}, {1024 * 1152}
s_and_b32 s{S_OB}, s{S_CID}, 0xfc
s_mov_b32 s{S_TAG}, 0
s_mov_b32 s{S_NEED}, 1
s_{o.get('varsel', 'and_b32 s%d, s%d, 1' % (S_VAR, S_B))}
; poll address: lane r -> flag of producer (j+r)&3, wave l
v_add_u32 v1, s{S_J}, v0
v_and_b32 v1, 3, v1
v_add_u32 v1, s{S_OB}, v1
v_lshlrev_b32 v1, 2, v1
v_add_u32 v1, s{S_W}, v1
v_lshlrev_b32 v{VPA}, 7, v1
v_mov_b32 v{VPOLL}, 0
v_mov_b32 v{VPOLL2}, 0
s_mov_b32 s{S_PCNT}, 0
v_mov_b32 v{VTG}, 0
v_mov_b32 v{VRD}, s{S_RDY}
v_mov_b32 v{VONE}, 1
v_mov_b32 v{VONE + 1}, 1
"""
        vm = []
        known = 0
        nfirst = o.get("nfirst", 3)
        gi = -1
        pend_pub = []
        poll_at = tag_at = None
        slp = f"s_sleep {o['lsleep']}\n" if o["lsleep"] else ""
        curblk = None
        seen_e = 0
        polling = False
        stage_reg = {}
        quiet = False
        def gettag():
            nonlocal tag_at
            if tag_at is None:
                return ""
            r = f"""s_waitcnt vmcnt({min(63, len(vm) - tag_at)})
v_readfirstlane_b32 s{S_TAG}, v{VTG}
s_nop 1
s_cmp_lg_u32 s{S_TAG}, 0
s_cbranch_scc1 L_ltagok
s_call_b64 s[{S_LINK}:{S_LINK + 1}], L_waittag
L_ltagok:
"""
            tag_at = None
            return r

        for pos, item in enumerate(self.items):
            name, _, var = item.partition("/")
            if name in ("@two", "@twn"):
                tmod = o["two_mod"] if name == "@two" else " nt"
                if var:
                    t += f"s_cmp_lg_u32 s{S_VAR}, {int(var)}\ns_cbranch_scc1 L_skip{pos}\n"
                t += f"""v_lshrrev_b32 v1, 1, v0
s_lshl_b32 s{S_T0}, s{S_W}, 5
v_add_u32 v1, s{S_T0}, v1
v_mul_u32_u24 v1, 1152, v1
v_and_b32 v2, 1, v0
v_lshl_add_u32 v1, v2, 7, v1
s_mul_i32 s{S_T0}, s{S_B}, {128 * 1152}
s_add_u32 s{S_T0}, s{S_T0}, s{S_WOB}
s_lshl_b32 s{S_T1}, s{S_J}, 8
s_add_u32 s{S_T0}, s{S_T0}, s{S_T1}
buffer_load_dword v{VT}, v1, {srd(SRD_WO)}, s{S_T0} offen{tmod}
v_and_b32 v1, 7, v0
s_lshl_b32 s{S_T0}, s{S_W}, 3
v_add_u32 v1, s{S_T0}, v1
v_mul_u32_u24 v1, 1152, v1
s_lshl_b32 s{S_T0}, s{S_J}, 3
s_add_u32 s{S_T0}, s{S_T0}, s{S_B}
s_mul_i32 s{S_T0}, s{S_T0}, {32 * 1152}
s_add_u32 s{S_T0}, s{S_T0}, s{S_WOB}
s_add_u32 s{S_T0}, s{S_T0}, 1024
s_mov_b64 exec, 0xff
buffer_load_dword v{VT}, v1, {srd(SRD_WO)}, s{S_T0} offen{tmod}
s_mov_b64 exec, -1
"""
                if var:
                    t += f"L_skip{pos}:\n"
                continue
            if name.startswith("@tq"):
                a, b = int(name[3]), int(name[4])
                t += f"""s_cmp_gt_u32 s{S_W}, {b - a}
s_cbranch_scc1 L_tq{pos}
s_add_u32 s{S_T0}, s{S_W}, {a}
s_lshl_b32 s{S_T1}, s{S_T0}, 19
s_add_u32 s{S_T1}, s{S_T1}, s{S_WQB}
s_lshl_b32 s{S_T2}, s{S_B}, 16
s_add_u32 s{S_T1}, s{S_T1}, s{S_T2}
s_lshl_b32 s{S_T0}, s{S_T0}, 7
s_add_u32 s{S_T0}, s{S_T0}, s{S_XB}
s_mul_i32 s{S_T2}, s{S_J}, {32 * 1152}
s_add_u32 s{S_T0}, s{S_T0}, s{S_T2}
v_lshrrev_b32 v8, 2, v0
v_lshlrev_b32 v8, 13, v8
v_and_b32 v9, 3, v0
v_lshl_add_u32 v8, v9, 7, v8
v_mul_u32_u24 v9, 1152, v0
s_mov_b32 exec_hi, 0
buffer_load_dword v{VT}, v8, {srd(SRD_WQ)}, s{S_T1} offen{o.get('tq_mod', '')}
buffer_load_dword v{VT}, v9, {srd(SRD_X)}, s{S_T0} offen{o.get('tq_mod', '')}
s_mov_b32 exec_hi, -1
L_tq{pos}:
"""
                continue
            if name[:3] in ("@tk", "@tv"):
                r = SRD_K if name[2] == "k" else SRD_V
                if var:
                    t += f"s_cmp_lg_u32 s{S_VAR}, {int(var)}\ns_cbranch_scc1 L_skip{pos}\n"
                t += f"""s_lshl_b32 s{S_T0}, s{S_W}, 13
s_add_u32 s{S_T0}, s{S_T0}, s{S_KVB}
s_add_u32 s{S_T0}, s{S_T0}, {int(name[3]) * 32768}
v_lshlrev_b32 v8, 7, v0
buffer_load_dword v{VT}, v8, {srd(r)}, s{S_T0} offen
"""
                if var:
                    t += f"L_skip{pos}:\n"
                continue
            if name == "@tag":
                t += f"s_lshl_b32 s{S_T0}, s{S_COMP}, 2\nbuffer_load_dword v{VTG}, v{VZ}, {srd(SRD_DBG)}, s{S_T0} offen sc1\n"
                vm.append("tag")
                tag_at = len(vm)
                continue
            if name == "@clr":
                t += f"""s_lshl_b32 s{S_T0}, s{S_CID}, 15
s_add_u32 s{S_T0}, s{S_T0}, {WS_PART}
v_mov_b32 v28, -1
v_mov_b32 v29, -1
v_mov_b32 v30, -1
v_mov_b32 v31, -1
"""
                for q in range(2, 8):
                    t += f"s_add_u32 s{S_T1}, s{S_T0}, {q * 4096}\nbuffer_store_dwordx4 v[28:31], v{VL}, {srd(SRD_WS)}, s{S_T1} offen sc1\n"
                    vm.append("clr")
                clr_at = len(vm)
                continue
            if name == "@zflag":
                t += gettag() + f"""s_waitcnt vmcnt({min(63, len(vm) - clr_at)})
s_add_u32 s{S_T1}, s{S_TAG}, 1
s_lshl_b32 s{S_T0}, s{S_CID}, 2
s_add_u32 s{S_T0}, s{S_T0}, s{S_W}
s_lshl_b32 s{S_T0}, s{S_T0}, 7
v_mov_b32 v4, s{S_T1}
s_mov_b64 exec, 1
buffer_store_dword v4, v{VZ}, {srd(SRD_WS)}, s{S_T0} offen offset:4 sc1
s_mov_b64 exec, -1
"""
                vm.append("cf")
                continue
            if name == "@pollon":
                t += gettag()
                polling = True
                continue
            if name == "@poll":
                t += f"buffer_load_dword v{VPOLL}, v{VPA}, {srd(SRD_WS)}, 0 offen sc1\n"
                vm.append("poll")
                poll_at = len(vm)
                continue
            mode = ""
            if name[1] == ":":
                mode, name = name[0], name[2:]
            g = self.G[name]
            if mode == "R":
                if name not in stage_reg:
                    stage_reg[name] = 32 + 16 * len(stage_reg)
                kw = g.kw
                if g.kind == "z":
                    t += f"; ---- {pos} {item}\ns_lshl_b32 s{S_T0}, s{S_CID}, 15\n"
                    for u in range(4 - 2 * kw["sub"]):
                        d = stage_reg[name] + 4 * u
                        t += f"s_add_u32 s{S_SOFF}, s{S_T0}, {WS_PART + 8192 + kw['sub'] * 16384 + u * 4096}\n"
                        t += f"buffer_load_dwordx4 v[{d}:{d + 3}], v{VL}, {srd(SRD_WS)}, s{S_SOFF} offen{o['pre_mod']}\n"
                        vm.append("z")
                    clr_at = len(vm)
                    continue
                v, r = (VK, SRD_K) if g.kind == "k" else (VV, SRD_V)
                t += f"; ---- {pos} {item}\n"
                if var:
                    t += f"s_cmp_lg_u32 s{S_VAR}, {int(var)}\ns_cbranch_scc1 L_skip{pos}\n"
                for u in range(4):
                    d = stage_reg[name] + 4 * u
                    t += f"s_add_u32 s{S_SOFF}, s{S_KVB}, {kw['h'] * 32768 + kw['sub'] * 16384 + u * 4096}\n"
                    t += f"buffer_load_dwordx4 v[{d}:{d + 3}], v{v}, {srd(r)}, s{S_SOFF} offen{o['kv_mod']}\n"
                    if not var:
                        vm.append("r")
                if o["thr"] is not None and o.get("rthr", True):
                    t += f"s_waitcnt vmcnt({o['thr']})\n"
                if var:
                    t += f"L_skip{pos}:\n"
                quiet = False
                continue
            gi += 1
            t += f"; ---- {pos} {item} slot {g.slot} free_req {g.free_req} need {g.need}\n"
            if var:
                t += f"s_cmp_lg_u32 s{S_VAR}, {int(var)}\ns_cbranch_scc1 L_skip{pos}\n"
            ps = f"s_call_b64 s[{S_LINK}:{S_LINK + 1}], L_pollstep\n" if polling else ""
            if g.free_req > known and not o.get('nofree'):
                off = LDS_DONE + 4 * (63 - (g.free_req - 1))
                if not var:
                    known = g.free_req
                t += f"L_fchk{pos}:\nds_read_b32 v4, v{VDA} offset:{off}\ns_waitcnt lgkmcnt(0)\nv_cmp_ne_u32 vcc, 1, v4\ns_nop 1\ns_cbranch_vccz L_fok{pos}\n"
                t += (ps if polling else slp) + self.spin_guard(f"L_fok{pos}") + f"s_branch L_fchk{pos}\nL_fok{pos}:\n"
            k = g.kind
            kw = g.kw
            if mode == "D":
                if not quiet:
                    t += "s_waitcnt vmcnt(0)\n"
                    quiet = True
                t += f"v_add_u32 v5, {g.addr}, v{VL}\n"
                for u in range(2 if name == "Zb" else 4):
                    d = stage_reg[name] + 4 * u
                    t += f"ds_write_b128 v5, v[{d}:{d + 3}] offset:{u * 4096}\n"
                if name == "Za":
                    continue
                t += f"s_mov_b64 exec, 1\nds_write_b64 v{VRD}, v[{VONE}:{VONE + 1}] offset:{LDS_READY + 32 * g.need}\ns_mov_b64 exec, -1\n"
                if o["stamps"] and (o.get("only") is None or g.name in o["only"]):
                    t += self.lstamp(g.name)
                continue
            quiet = False
            if k == "o" and kw["h"] + 1 > seen_e:
                e = seen_e = kw["h"] + 1
                t += gettag()
                t += f"""L_rw{pos}:
s_cmp_gt_u32 s{S_NEED}, {e}
s_cbranch_scc1 L_rok{pos}
s_call_b64 s[{S_LINK}:{S_LINK + 1}], L_pollstep
""" + self.spin_guard(f"L_rok{pos}") + f"s_branch L_rw{pos}\nL_rok{pos}:\n"
                if e == 2:
                    polling = False
            if k in ("x", "wq") and kw["i"] != curblk:
                curblk = kw["i"]
                if curblk < cm:
                    t += f"s_mov_b32 s{S_BLK}, {curblk}\n"
                else:
                    t += f"s_add_u32 s{S_BLK}, s{S_ROT}, {cm}\ns_add_u32 s{S_ROT}, s{S_ROT}, 1\ns_cmp_eq_u32 s{S_ROT}, {nrot}\ns_cselect_b32 s{S_ROT}, 0, s{S_ROT}\n"
            gb = S_GB
            if k == "x":
                t += f"s_lshl_b32 s{S_GB}, s{S_BLK}, 7\ns_add_u32 s{S_GB}, s{S_GB}, s{S_XB}\n"
                v, r, offs, mod = VX, SRD_X, [u * 36864 for u in range(4)], o["x_mod"]
            elif k == "wq":
                t += f"s_lshl_b32 s{S_GB}, s{S_BLK}, 19\ns_add_u32 s{S_GB}, s{S_GB}, s{S_WQB}\n"
                v, r, offs, mod = VW, SRD_WQ, [kw["sub"] * 32 * 8192 + (u & 1) * 16 * 8192 + (u >> 1) * 256 for u in range(4)], o["wq_mod"]
            elif k in ("k", "v"):
                gb = S_KVB
                v, r = (VK, SRD_K) if k == "k" else (VV, SRD_V)
                offs = [kw["h"] * 32768 + kw["sub"] * 16384 + u * 4096 for u in range(4)]
                mod = o["kv_mod"]
            elif k == "wo":
                t += f"s_add_u32 s{S_GB}, s{S_J}, {kw['r']}\ns_and_b32 s{S_GB}, s{S_GB}, 3\ns_mul_i32 s{S_GB}, s{S_GB}, {256 * 1152}\n"
                t += f"s_add_u32 s{S_GB}, s{S_GB}, s{S_WOB}\ns_lshl_b32 s{S_T0}, s{S_J}, 8\ns_add_u32 s{S_GB}, s{S_GB}, s{S_T0}\n"
                v, r, offs, mod = VU, SRD_WO, [(kw["h"] * 128 + kw["sub"] * 64) * 1152 + u * 18432 for u in range(4)], o["wo_mod"]
            elif k == "l8":
                t += f"s_mul_i32 s{S_GB}, s{S_J}, {256 * 1152}\ns_add_u32 s{S_GB}, s{S_GB}, s{S_WOB}\n"
                v, r, offs, mod = VE, SRD_WO, [kw["h"] * 128 * 1152 + 1024 + u * 36864 for u in range(4)], o["wo_mod"]
            elif k == "o":
                t += f"s_add_u32 s{S_GB}, s{S_J}, {kw['r']}\ns_and_b32 s{S_GB}, s{S_GB}, 3\ns_add_u32 s{S_GB}, s{S_GB}, s{S_OB}\ns_lshl_b32 s{S_GB}, s{S_GB}, 16\n"
                v, r, offs, mod = VL, SRD_WS, [WS_O + kw["h"] * 32768 + kw["sub"] * 16384 + u * 4096 for u in range(4)], o["o_mod"]
            if k in ("x", "wq") and kw["i"] in o.get("nt_blocks", []):
                mod = " nt"
            for u in range(0 if (k == "o" and o.get("noO")) else 4):
                t += f"s_add_u32 m0, s{S_L1024}, {g.addr + u * 4096}\ns_add_u32 s{S_SOFF}, s{gb}, {offs[u]}\n"
                t += f"buffer_load_dwordx4 v{v}, {srd(r)}, s{S_SOFF} offen{mod} lds\n"
                if not var:
                    vm.append(g.name)
            pend_pub.append(g)
            if gi == 0:
                t += "s_barrier\n"
            if True:
                for pg in pend_pub:
                    new = self.stages[pg.need]["new"]
                    kk = new.index(pg)
                    t += f"s_add_u32 m0, s{S_RDY}, {LDS_READY + 32 * pg.need + 4 * kk}\ns_mov_b64 exec, {3 if len(new) == 1 else 1}\n"
                    t += f"global_load_lds_dword v{VZ}, s[{S_TAB}:{S_TAB + 1}]\ns_mov_b64 exec, -1\n"
                    if not var:
                        vm.append("f")
                pend_pub = []
                if gi == nfirst - 1:
                    t += rest
                    if o["stamps"]:
                        t += self.lstamp("start")
                if o["thr"] is not None and gi >= nfirst:
                    t += f"s_waitcnt vmcnt({o['thr']})\n"
                if o["stamps"] and not var and gi >= nfirst and (o.get("only") is None or g.name in o["only"]):
                    t += self.lstamp(g.name)
            if var:
                t += f"L_skip{pos}:\n"
        t += f"""s_cmp_lg_u32 s{S_W}, 0
s_cbranch_scc1 L_ldone
v_and_b32 v1, 15, v0
s_lshl_b32 s{S_T0}, s{S_COMP}, 4
v_add_u32 v1, s{S_T0}, v1
v_lshlrev_b32 v1, 2, v1
v_add_u32 v1, s{S_J}, v1
v_lshlrev_b32 v1, 7, v1
{"s_branch L_ldone" if o.get("nowaitO") else ""}
s_add_u32 s{S_T1}, s{S_TAG}, 3
L_l8poll:
buffer_load_dword v2, v1, {srd(SRD_WS)}, 0 offen sc1
s_waitcnt vmcnt(0)
v_subrev_u32 v2, s{S_T1}, v2
v_cmp_lt_u32 vcc, 4, v2
s_nop 1
s_cbranch_vccz L_l8ok
s_sleep 2
""" + self.spin_guard("L_l8ok") + f"""s_branch L_l8poll
L_l8ok:
s_lshl_b32 s{S_T0}, s{S_CID}, 14
s_add_u32 s{S_T0}, s{S_T0}, {WS_L8}
"""
        for c in range(16):
            if c and c % 4 == 0:
                t += f"s_add_u32 s{S_T0}, s{S_T0}, 4096\n"
            t += f"buffer_load_dwordx4 v[{32 + 4 * c}:{35 + 4 * c}], v{VL}, {srd(SRD_WS)}, s{S_T0} offen offset:{(c % 4) * 1024} sc1\n"
        t += f"""v_and_b32 v1, 31, v0
v_lshrrev_b32 v2, 5, v0
v_and_b32 v5, 19, v1
v_bfe_u32 v6, v1, 2, 1
v_lshl_add_u32 v5, v6, 3, v5
v_bfe_u32 v6, v1, 3, 1
v_lshl_add_u32 v5, v6, 2, v5
v_mul_u32_u24 v6, {4 * 2304}, v2
v_lshl_add_u32 v9, v5, 1, v6
s_lshl_b32 s{S_T0}, s{S_B}, 2
s_add_u32 s{S_T0}, s{S_T0}, s{S_J}
s_lshl_b32 s{S_T0}, s{S_T0}, 2
s_add_u32 s{S_T0}, s{S_T0}, s{S_O}
s_mul_i32 s{S_T0}, s{S_T0}, {8 * 2304}
s_mul_i32 s{S_T1}, s{S_P}, 1152
s_add_u32 s{S_T0}, s{S_T0}, s{S_T1}
s_add_u32 s{S_T0}, s{S_T0}, 1024
"""
        for c in range(16):
            t += f"s_waitcnt vmcnt({15 - c})\n"
            for d in range(4):
                s = 32 + 4 * c + d
                if c == 0:
                    t += f"v_lshlrev_b32 v{24 + 2 * d}, 16, v{s}\nv_and_b32 v{25 + 2 * d}, 0xffff0000, v{s}\n"
                else:
                    t += f"v_lshlrev_b32 v2, 16, v{s}\nv_and_b32 v3, 0xffff0000, v{s}\n"
                    t += f"v_add_f32 v{24 + 2 * d}, v{24 + 2 * d}, v2\nv_add_f32 v{25 + 2 * d}, v{25 + 2 * d}, v3\n"
        for d in range(4):
            tt, p = d >> 1, d & 1
            t += f"v_cvt_pk_bf16_f32 v{4 + d}, v{24 + 2 * d}, v{25 + 2 * d}\n"
            t += f"s_add_u32 s{S_T1}, s{S_T0}, {2 * p * 2304}\ns_add_u32 s{S_T2}, s{S_T0}, {(2 * p + 1) * 2304}\n"
            t += f"buffer_store_short v{4 + d}, v9, {srd(SRD_OUT)}, s{S_T1} offen offset:{tt * 64}{o['out_mod']}\n"
            t += f"buffer_store_short_d16_hi v{4 + d}, v9, {srd(SRD_OUT)}, s{S_T2} offen offset:{tt * 64}{o['out_mod']}\n"
        t += "L_ldone:\n"
        if o.get("amp") == "ldone":
            t += "s_waitcnt vmcnt(0)\ns_memrealtime s[76:77]\ns_waitcnt lgkmcnt(0)\ns_mov_b32 s74, s76\ns_branch L_amp0\n"
        if o["stamps"]:
            self.lnames.append("done")
            t += self.stamp_out([240, 241], len(self.lnames) - 1)
        t += "s_endpgm\n"
        t += f"""L_pollstep:
s_cmp_ge_u32 s{S_NEED}, 3
s_cbranch_scc1 L_psleep
s_add_u32 s{S_PCNT}, s{S_PCNT}, 1
s_sleep {o["psleep"]}
s_mov_b64 exec, 15
s_and_b32 s{S_T1}, s{S_PCNT}, {o["pslow"] if o["dual_flag"] else 0}
s_cbranch_scc1 L_pfast
buffer_load_dword v{VPOLL}, v{VPA}, {srd(SRD_WS)}, 0 offen sc1
s_branch L_pwait
L_pfast:
s_mov_b32 s{S_T1}, {WS_FLAGS2}
buffer_load_dword v{VPOLL2}, v{VPA}, {srd(SRD_WS)}, s{S_T1} offen sc1
L_pwait:
s_waitcnt vmcnt(0)
L_pagain:
s_mov_b64 exec, 15
s_add_u32 s{S_T1}, s{S_TAG}, s{S_NEED}
s_sub_u32 s{S_T3}, 7, s{S_NEED}
v_subrev_u32 v4, s{S_T1}, v{VPOLL}
v_subrev_u32 v5, s{S_T1}, v{VPOLL2}
v_min_u32 v4, v4, v5
v_cmp_lt_u32 vcc, s{S_T3}, v4
s_mov_b64 exec, -1
s_nop 0
s_cbranch_vccnz L_pret
{f"s_memrealtime s[60:61]{chr(10)}s_add_u32 m0, s{S_NEED}, 40{chr(10)}s_waitcnt lgkmcnt(0){chr(10)}v_writelane_b32 v241, s60, m0" if o.get("fstamps") else ""}
s_add_u32 s{S_NEED}, s{S_NEED}, 1
s_cmp_lt_u32 s{S_NEED}, 3
s_cbranch_scc1 L_pagain
s_branch L_pret
L_psleep:
{slp}L_pret:
s_setpc_b64 s[{S_LINK}:{S_LINK + 1}]
"""
        t += f"""L_waittag:
s_lshl_b32 s{S_T0}, s{S_COMP}, 2
L_wrtag:
buffer_load_dword v4, v{VZ}, {srd(SRD_DBG)}, s{S_T0} offen sc1
s_waitcnt vmcnt(0)
v_readfirstlane_b32 s{S_TAG}, v4
s_nop 1
s_cmp_lg_u32 s{S_TAG}, 0
s_cbranch_scc1 L_wrret
""" + self.spin_guard("L_wrret") + f"""s_branch L_wrtag
L_wrret:
s_setpc_b64 s[{S_LINK}:{S_LINK + 1}]
"""
        return t

    def generate(self, header_comment=""):
        o = self.o
        self.build_mfma()
        self.alloc_slots()
        self.build_fillers()
        S = Stream()
        if o["stamps"]:
            self.stamp(S, "start")
        self.compute_stream(S)
        self.compute_tail(S)
        t = header_comment + f"; @launch grid=(256,1,1) block=(512,1,1) lds={LDS_BYTES}\n"
        t += f""".amdgcn_target "amdgcn-amd-amdhsa--gfx950"
.text
.globl {KNAME}
.p2align 8
.type {KNAME},@function
{KNAME}:
"""
        t += self.prologue() + self.loader() + (".p2align 6\n" if o.get("calign", True) else "") + "L_compute:\n" + "s_nop 0\n" * o.get("cphase", 0) + self.compute_prologue() + S.text()
        if o["stamps"]:
            self.cnames.append("done")
            t += self.stamp_out([V_ST], len(self.cnames) - 1)
        if o.get("endwait"):
            t += "s_waitcnt vmcnt(0)\n"
        if o.get("endwb"):
            t += "s_waitcnt vmcnt(0)\nbuffer_wbl2 sc1\ns_waitcnt vmcnt(0)\n"
        if o.get("amp"):
            t += f"""s_waitcnt vmcnt(0)
s_memrealtime s[76:77]
s_waitcnt lgkmcnt(0)
"""
            if o["amp"] == "done":
                t += "s_mov_b32 s74, s76\n"
            if o["amp"] == "ldone":
                t += "s_branch L_end\n"
            if o.get("ampwg", 77) >= 0:
                t += f"s_cmp_lg_u32 s2, {o.get('ampwg', 77)}\ns_cbranch_scc1 L_end\n"
            t += f"""L_amp0:
s_sub_u32 s74, s74, s72
s_lshl_b32 s74, s74, 4
L_amp:
s_memrealtime s[78:79]
s_waitcnt lgkmcnt(0)
s_sub_u32 s78, s78, s76
s_cmp_lt_u32 s78, s74
s_cbranch_scc1 L_amp
"""
        t += "L_end:\ns_endpgm\n"
        t += "s_nop 0\n" * o.get("sphase", 0)
        for st, cnt in self.spins:
            t += f"""L_spin{st}:
ds_read_b32 v{V_FLAG}, v{V_FA} offset:{LDS_READY + 32 * st}
s_waitcnt lgkmcnt(0)
v_cmp_ne_u32 vcc, {cnt}, v{V_FLAG}
s_nop 1
s_cbranch_vccz L_back{st}
""" + self.spin_guard(f"L_back{st}") + f"s_branch L_spin{st}\n"
        t += self.subs
        t += f"""L_lead:
s_waitcnt vmcnt({S.marks["lead"]})
v_bfe_u32 v{V_MX0}, v{V_MX0}, 3, 8
v_bfe_u32 v{V_MX1}, v{V_MX1}, 3, 8
v_bfe_u32 v{V_MC}, v{V_MC}, 3, 8
s_mov_b32 s{S_T1}, 0
L_scan:
v_cmp_eq_u32 vcc, s{S_T1}, v{V_MX0}
v_cmp_eq_u32 s[{S_T2}:{S_T3}], s{S_T1}, v{V_MX1}
v_cmp_eq_u32 s[84:85], s{S_T1}, v{V_MC}
s_nop 1
s_or_b64 vcc, vcc, s[{S_T2}:{S_T3}]
s_or_b64 vcc, vcc, s[84:85]
s_cbranch_vccz L_scandone
s_add_u32 s{S_T1}, s{S_T1}, 1
s_branch L_scan
L_scandone:
s_lshl_b32 s{S_T1}, s{S_T1}, 3
s_or_b32 s{S_T1}, s{S_T1}, 0x800
v_mov_b32 v{V_TMP1}, s{S_T1}
s_mov_b64 exec, 1
buffer_store_dword v{V_TMP1}, v{V_ZERO}, {srd(SRD_DBG)}, s{S_T4} offen sc1
s_mov_b64 exec, -1
s_branch L_leadret
"""
        t += f"""L_tagspin:
buffer_load_dword v{V_TAG}, v{V_ZERO}, {srd(SRD_DBG)}, s{S_T4} offen sc1
s_waitcnt vmcnt(0)
v_cmp_eq_u32 vcc, 0, v{V_TAG}
s_nop 1
s_cbranch_vccz L_tagok
""" + self.spin_guard("L_tagok") + "s_branch L_tagspin\n"
        t += f"""L_fslow:
buffer_load_dword v{V_TMP1}, v{V_TMP0}, {srd(SRD_WS)}, 0 offen sc1
s_add_u32 s{S_T1}, s{S_TAG}, 4
s_waitcnt vmcnt(0)
v_subrev_u32 v{V_TMP1}, s{S_T1}, v{V_TMP1}
v_cmp_lt_u32 vcc, 3, v{V_TMP1}
s_add_u32 s{S_SPIN}, s{S_SPIN}, 1
s_cmp_gt_u32 s{S_SPIN}, {o['spin_limit']}
s_cbranch_scc1 L_fforce
s_cbranch_vccnz L_fpoll
L_fforce:
s_bitset1_b32 s{S_GOT}, 31
s_branch L_fpoll
"""
        t += f"""L_ownspin:
buffer_load_dword v{V_TMP1}, v{V_TMP0}, {srd(SRD_WS)}, 0 offen offset:4 sc1
s_waitcnt vmcnt(0)
v_subrev_u32 v{V_TMP1}, s{S_T1}, v{V_TMP1}
v_cmp_lt_u32 vcc, 6, v{V_TMP1}
s_nop 1
s_cbranch_vccz L_ownok
""" + self.spin_guard("L_ownok") + "s_branch L_ownspin\n"
        t += f""".p2align 6
L_ones:
.fill 128, 4, 1
L_codeend:
.section .rodata,"a"
.p2align 6
.amdhsa_kernel {KNAME}
  .amdhsa_next_free_vgpr 256
  .amdhsa_next_free_sgpr 102
  .amdhsa_accum_offset 256
  .amdhsa_group_segment_fixed_size 0
  .amdhsa_kernarg_size 104
  .amdhsa_user_sgpr_count 2
  .amdhsa_user_sgpr_kernarg_segment_ptr 1
  .amdhsa_system_sgpr_workgroup_id_x 1
  .amdhsa_float_denorm_mode_32 3
.end_amdhsa_kernel
"""
        self.stats = dict(nops=S.nops, waits=S.nwaits, instr=S.ninstr, mfma=len(self.ms), stages=len(self.stages))
        return t


if __name__ == "__main__":
    import json
    opt = json.loads(sys.argv[2]) if len(sys.argv) > 2 else {}
    g = Gen(**opt)
    txt = g.generate()
    open(sys.argv[1], "w").write(txt)
    json.dump([g.cnames, g.lnames], open(sys.argv[1] + ".names", "w"))
    print(g.stats, file=sys.stderr)
```

```python
import sys
from emit import *

KNAME = "concat_heads__mha_block_cached__gqa_block_cached__near_ridge_kernel"

DEFAULT = dict(
    stamps=False, la=4, budget=5, thr=10, order=None, common=1,
    kv_mod=" nt", x_mod="", wq_mod="", wo_mod="", o_mod="", two_mod="", ost_mod=" sc1", pst_mod=" sc1", pld_mod=" sc1",
    pre_mod=" sc1 nt", out_mod="",
    pairwait=True, late=True, late_lead=30, pk=True, lsleep=1, psleep=2, pslow=15, cprio=3,
    e1_at=8, e2_at=40, e3_at=72, own_at=150, lead_at=30, n1_start=2, n1_step=2,
    varsel="bfe_u32 s100, s2, 0x20005", spin_limit=1 << 18,
)

WS_FLAGS2 = 0x40000
WS_O = 0x100000
WS_PART = 0x1100000
WS_L8 = 0x2100000
WS_STAMP = 0x8000000
LDS_READY = 0x000
LDS_DONE = 0x7f0
SLOT0 = 4096
SLOT = 16384
NSLOT = 9
LDS_BYTES = SLOT0 + NSLOT * SLOT

S_WAVE, S_P, S_O, S_B, S_J, S_COMP, S_CID, S_W = 3, 4, 5, 6, 7, 8, 9, 10
SRD_X, SRD_K, SRD_V, SRD_WQ, SRD_WO, SRD_WS, SRD_OUT, SRD_DBG = 12, 16, 20, 24, 28, 32, 36, 40
S_T0, S_T1, S_T2, S_T3 = 44, 45, 46, 47
S_TAG, S_SPIN, S_SCALE, S_T4 = 56, 57, 58, 59
S_STAMP = 60
S_LINK = 92
S_NEED, S_RDY = 94, 95
S_TAB = 96
S_L1024, S_SOFF, S_VAR, S_PCNT = 98, 99, 100, 101
S_XB, S_WQB, S_KVB, S_WOB, S_BLK, S_OWNB, S_GB, S_ROT, S_HD = 48, 49, 50, 51, 52, 53, 54, 55, 11
S_OST, S_FLAGA, S_PARTB, S_L8B, S_OUTB, S_INBOX, S_LEAD, S_GOT, S_DEC = 48, 49, 50, 51, 52, 53, 54, 55, 11


def srd(r):
    return f"s[{r}:{r + 3}]"


class Group:
    def __init__(self, name, kind, **kw):
        self.name, self.kind, self.kw = name, kind, kw
        self.need = self.last = self.slot = None
        self.free_req = 0

    @property
    def addr(self):
        return SLOT0 + self.slot * SLOT


def build_groups():
    G = {}

    def add(name, kind, **kw):
        G[name] = Group(name, kind, **kw)
    for i in range(9):
        add(f"X{i}", "x", i=i)
        add(f"W{i}a", "wq", i=i, sub=0)
        add(f"W{i}b", "wq", i=i, sub=1)
    for h in range(2):
        for s, sub in enumerate("ab"):
            add(f"K{h}{sub}", "k", h=h, sub=s)
            add(f"V{h}{sub}", "v", h=h, sub=s)
            add(f"O{h}{sub}", "o", h=h, sub=s)
        add(f"E{h}", "l8", h=h)
    for n in range(3):
        for s, sub in enumerate("abcd"):
            add(f"U{n}{sub}", "wo", n=n, sub=s)
    for s, sub in enumerate("abcd"):
        add(f"F{sub}", "fin", sub=s)
        add(f"Z{sub}", "z", sub=s)
    return G


def make_order(ins=None, post=("K1", "V0", "V1"), nvar=4, step=1, zpos=3, opos=(8, 13), tagpos=0):
    ins = {14: ["@two"], 20: ["K0a", "K0b"]} if ins is None else ins
    o = []
    gi = 0
    for i in range(9):
        for n in (f"X{i}", f"W{i}a", f"W{i}b"):
            o.append(n)
            for p, items in ins.items():
                for v in range(nvar):
                    if min(p + v * step, 26) == gi:
                        o += [it + (f"/{v}" if nvar > 1 else "") for it in items]
            gi += 1
    for p in post:
        o += [p] if p[0] == "@" else [p + "a", p + "b"]
    rest = ["E0", "E1"] + [f"U{n}{s}" for n in range(3) for s in "abcd"] + [f"F{s}" for s in "abcd"]
    for i, n in enumerate(rest):
        if i == tagpos:
            o.append("@tag")
        if i == zpos:
            o += [f"R:Z{s}" for s in "abcd"]
        if i == zpos + 3:
            o.append("@zflag")
        for h in range(2):
            if i == opos[h]:
                o.append(f"O{h}a")
            if i == opos[h] + 2:
                o.append(f"O{h}b")
        o.append(n)
    return o + [f"D:Z{s}" for s in "abcd"]


def T(i):
    return 16 * i


ARING, NA = 192, 6
BRING, NB = 216, 3
V_TR, V_TR8, V_XB0, V_XB1, V_KB0, V_KB1, V_LIN = 228, 229, 230, 231, 232, 233, 234
V_ZERO, V_FA, V_FLAG = 235, 236, 238
V_POOL, NPOOL = 239, 5
V_MX0, V_MX1, V_MC, V_SUM1, V_ST, V_SUM0, V_TMP0, V_TMP1, V_TAG, V_FV, V_OUTA = 244, 245, 246, 248, 249, 250, 251, 252, 253, 254, 255


class Load:
    def __init__(self, group, pat, offs, ring, reg=None):
        self.group, self.pat, self.offs, self.ring, self.reg = group, pat, offs, ring, reg


class M:
    def __init__(self, d, a, b, c0, stage, extra=()):
        self.d, self.a, self.b, self.c0, self.stage, self.extra = d, a, b, c0, stage, list(extra)


def tr_load(g, ks, t, extra=0):
    base = extra + ks * 4096 + t * 256
    return Load(g, V_TR, [base, base + 1024], "A")


def tr8_load(g, s, t):
    base = s * 2048 + t * 256
    return Load(g, V_TR8, [base, base + 512], "A")


class Gen:
    def __init__(self, **opt):
        self.o = dict(DEFAULT)
        self.o.update(opt)
        self.G = build_groups()
        self.stages, self.ms, self.mark = [], [], {}
        self.cnames, self.lnames = [], []
        self.tm = 's_memrealtime'

    def stage(self, name):
        self.stages.append(dict(name=name, new=[]))
        self.mark["st_" + name] = len(self.ms)
        return len(self.stages) - 1

    def use(self, g, st):
        if g.need is None:
            g.need = st
            self.stages[st]["new"].append(g)
            assert len(self.stages[st]["new"]) <= 2 or g.kind == "z"
        g.last = st

    def add(self, d, a, b, c0, st, extra=()):
        for x in [a, b] + list(extra):
            if isinstance(x, Load):
                self.use(x.group, st)
        self.ms.append(M(d, a, b, c0, st, extra))
        return len(self.ms) - 1

    def build_mfma(self):
        G, mk = self.G, self.mark
        for i in range(9):
            X = G[f"X{i}"]
            for sub in range(2):
                W = G[f"W{i}{'ab'[sub]}"]
                st = self.stage(f"Q{i}{'ab'[sub]}")
                xf = [Load(X, V_XB0 + ksl, [sub * 512], "B") for ksl in range(2)]
                seq = [(ksl, hh) for ksl in range(2) for hh in range(2)]
                if i == 8 and sub == 1:
                    seq = [(ksl, hh) for hh in range(2) for ksl in range(2)]
                for ksl, hh in seq:
                    for t in range(4):
                        c0 = (i == 0 and sub == 0 and ksl == 0)
                        mk[f"Qend{hh}{t}"] = self.add(T(4 * hh + t), tr_load(W, ksl, t, hh * 8192), xf[ksl], c0, st)
        for hh in range(2):
            for sub in range(2):
                K = G[f"K{hh}{'ab'[sub]}"]
                st = self.stage(f"S{hh}{'ab'[sub]}")
                for ktl in range(2):
                    kt = 2 * sub + ktl
                    for s in range(8):
                        a = Load(K, V_KB0 + (s & 1), [ktl * 8192 + (s >> 1) * 256], "A")
                        idx = self.add(T(4 * hh + kt), a, T(8 + 2 * hh) + 4 * s, s == 0, st)
                        mk.setdefault(f"S{hh}use{s}", idx)
                        mk[f"Send{hh}{kt}"] = idx
        for hh in range(2):
            for sub in range(2):
                V = G[f"V{hh}{'ab'[sub]}"]
                st = self.stage(f"PV{hh}{'ab'[sub]}")
                for sl in range(4):
                    s = 4 * sub + sl
                    for dt in range(4):
                        mk[f"PVend{hh}{dt}"] = self.add(T(4 * hh + dt), tr_load(V, sl, dt), T(8 + 2 * hh) + 4 * s, s == 0, st)
        ob = [T(8), T(10)]
        for hh in range(2):
            st = self.stage(f"L8{hh}")
            for s in range(8):
                for t in range(2):
                    idx = self.add(T(t), ob[hh] + 4 * s, tr8_load(G[f"E{hh}"], s, t), hh == 0 and s == 0, st)
                    mk.setdefault(f"L8use{hh}{s}", idx)
                    mk[f"L8end{hh}{t}"] = idx
        for n in range(3):
            for sub in range(4):
                U = G[f"U{n}{'abcd'[sub]}"]
                st = self.stage(f"P{n}{'abcd'[sub]}")
                for ksl in range(2):
                    s = 2 * sub + ksl
                    a = ob[n] + 4 * s if n < 2 else Load(G[f"O0{'ab'[s >> 2]}"], V_LIN, [(s & 3) * 4096], "B")
                    first = n == 0 and s == 0
                    for q, t in enumerate([3, 4, 5, 6, 7, 0, 1, 2] if first else range(8)):
                        extra = []
                        if n == 2 and sub == 3 and q % 4 == 2:
                            f = 2 * ksl + q // 4
                            extra = [Load(G["O1a"], V_LIN, [f * 4096], "R", T(8) + 4 * f)]
                        idx = self.add(T(t), a, tr_load(U, ksl, t & 3, (t >> 2) * 8192), first, st, extra)
                        if first:
                            mk[f"acc{t}"] = idx
        for lam in range(4):
            F = G[f"F{'abcd'[lam]}"]
            st = self.stage(f"P3{'abcd'[lam]}")
            for e in range(2):
                for s in range(8):
                    a = T(8) + 4 * s
                    if lam == 0 and e == 0 and s >= 4:
                        a = Load(G["O1b"], V_LIN, [(s & 3) * 4096], "R", a)
                    mk[f"fin{2 * lam + e}"] = self.add(T(2 * lam + e), a, tr8_load(F, s, e), False, st)
        st = self.stage("tail")
        for s in "abcd":
            self.use(G[f"Z{s}"], st)

    def alloc_slots(self):
        order = self.o["order"] or make_order()
        self.items = order
        names = []
        for n in order:
            n = n.split("/")[0]
            if n.startswith("R:") or n.startswith("@"):
                continue
            n = n[2:] if n.startswith("D:") else n
            if n not in names:
                names.append(n)
        assert sorted(names) == sorted(self.G.keys()), set(self.G) ^ set(names)
        free = [0] * NSLOT
        for n in names:
            g = self.G[n]
            k = min(range(NSLOT), key=lambda i: free[i])
            g.slot, g.free_req = k, free[k]
            assert g.free_req <= g.need, (g.name, g.free_req, g.need)
            free[k] = g.last + 1
        self.max_free = max(g.free_req for g in self.G.values())

    def build_fillers(self):
        mk, o = self.mark, self.o
        F = []

        def put(x, after=None, before=None, alt=None):
            F.append((x if isinstance(x, list) else [x], after, before, alt if o["pk"] else None))

        def cvt(d, a, b):
            return valu(f"v_cvt_pk_bf16_f32 v{d}, v{a}, v{b}", rd=[a, b], wr=[d])

        def store4(d, sreg, mod, tag=None):
            return I(f"buffer_store_dwordx4 {vr(d, 4)}, v{V_LIN}, {srd(SRD_WS)}, s{sreg} offen{mod}", "vst", rd=rng(d, 4) + [V_LIN], tag=tag)

        put([salu(f"s_cmp_lg_u32 s{S_LEAD}, 0"), I("s_cbranch_scc0 L_lead", "br"), label("L_leadret"), I("", "markvm", tag="lead")],
            after=o["lead_at"], before=60)
        put(I(f"buffer_load_dword v{V_TAG}, v{V_ZERO}, {srd(SRD_DBG)}, s{S_T4} offen sc1", "vld", rd=[V_ZERO], wr=[V_TAG]), after=118, before=140)
        put([valu(f"v_cmp_eq_u32 vcc, 0, v{V_TAG}", rd=[V_TAG]), salu("s_nop 0"), I("s_cbranch_vccnz L_tagspin", "br"), label("L_tagok"),
             valu(f"v_readfirstlane_b32 s{S_TAG}, v{V_TAG}", rd=[V_TAG], sw=[S_TAG])], after=250, before=262)
        for hh in range(2):
            for t in range(4):
                for p in range(8):
                    s = 2 * t + (p >> 2)
                    put(cvt(T(8 + 2 * hh) + 8 * t + p, T(4 * hh + t) + 2 * p, T(4 * hh + t) + 2 * p + 1),
                        after=mk[f"Qend{hh}{t}"], before=min(mk[f"S{hh}use{s}"], mk[f"S{hh}use0"] + 8 * t))

        def maxes(hh):
            for kt in range(4):
                b = T(4 * hh + kt)
                mx = V_MX0 + (kt & 1)
                for p in range(8):
                    if kt < 2 and p == 0:
                        put(valu(f"v_max_f32 v{mx}, v{b}, v{b + 1}", rd=[b, b + 1], wr=[mx]), after=mk[f"Send{hh}{kt}"])
                    else:
                        put(valu(f"v_max3_f32 v{mx}, v{mx}, v{b + 2 * p}, v{b + 2 * p + 1}", rd=[mx, b + 2 * p, b + 2 * p + 1], wr=[mx]),
                            after=mk[f"Send{hh}{kt}"])
            put(valu(f"v_max_f32 v{V_MX0}, v{V_MX0}, v{V_MX1}", rd=[V_MX0, V_MX1], wr=[V_MX0]))
            put(valu(f"v_mov_b32 v{V_MX1}, v{V_MX0}", rd=[V_MX0], wr=[V_MX1]))
            put(I(f"v_permlane32_swap_b32 v{V_MX0}, v{V_MX1}", "perm", rd=[V_MX0, V_MX1], wr=[V_MX0, V_MX1]))
            put(valu(f"v_max_f32 v{V_MX0}, v{V_MX0}, v{V_MX1}", rd=[V_MX0, V_MX1], wr=[V_MX0]))
            put(valu(f"v_mul_f32 v{V_MC}, s{S_SCALE}, v{V_MX0}", rd=[V_MX0], wr=[V_MC]))

        def exps(hh, before):
            vs = [V_SUM0, V_SUM1][hh]
            A0, A1 = V_MX0, V_MX1
            pend = []
            for pr in range(32):
                a = T(4 * hh) + 2 * pr
                b = a + 1
                put([valu(f"v_fma_f32 v{a}, v{a}, s{S_SCALE}, -v{V_MC}", rd=[a, V_MC], wr=[a]),
                     valu(f"v_fma_f32 v{b}, v{b}, s{S_SCALE}, -v{V_MC}", rd=[b, V_MC], wr=[b])], before=before,
                    alt=[valu(f"v_pk_fma_f32 {vr(a, 2)}, {vr(a, 2)}, s[{S_SCALE}:{S_SCALE + 1}], {vr(V_MC, 2)} op_sel_hi:[1,0,0] neg_lo:[0,0,1] neg_hi:[0,0,1]",
                              rd=[a, b, V_MC], wr=[a, b])])
                put(trans(f"v_exp_f32 v{a}, v{a}", rd=[a], wr=[a]), before=before)
                put(trans(f"v_exp_f32 v{b}, v{b}", rd=[b], wr=[b]), before=before)
                for x, al in pend:
                    put(x, before=before, alt=al)
                if pr == 0:
                    pend = [([valu(f"v_mov_b32 v{A0}, v{a}", rd=[a], wr=[A0]), valu(f"v_mov_b32 v{A1}, v{b}", rd=[b], wr=[A1])], None)]
                else:
                    pend = [([valu(f"v_add_f32 v{A0}, v{A0}, v{a}", rd=[A0, a], wr=[A0]),
                              valu(f"v_add_f32 v{A1}, v{A1}, v{b}", rd=[A1, b], wr=[A1])],
                             [valu(f"v_pk_add_f32 {vr(A0, 2)}, {vr(A0, 2)}, {vr(a, 2)}", rd=[A0, A1, a, b], wr=[A0, A1])])]
                pend.append((cvt(T(8 + 2 * hh) + pr, a, b), None))
            for x, al in pend:
                put(x, before=before, alt=al)
            put(valu(f"v_add_f32 v{vs}, v{A0}, v{A1}", rd=[A0, A1], wr=[vs]))
            put(valu(f"v_mov_b32 v{V_TMP0}, v{vs}", rd=[vs], wr=[V_TMP0]))
            put(I(f"v_permlane32_swap_b32 v{vs}, v{V_TMP0}", "perm", rd=[vs, V_TMP0], wr=[vs, V_TMP0]))
            put(valu(f"v_add_f32 v{vs}, v{vs}, v{V_TMP0}", rd=[vs, V_TMP0], wr=[vs]))
            put(trans(f"v_rcp_f32 v{vs}, v{vs}", rd=[vs], wr=[vs]))

        def norm(hh):
            ri = [V_SUM0, V_SUM1][hh]
            dst = T(8 + 2 * hh)
            for s in range(8):
                dt = s >> 1
                if hh == 0:
                    before = mk["st_L80"] if s < 4 else mk[f"L8use0{s}"]
                else:
                    before = min(mk[f"L8use1{s}"], mk["st_L80"] + o["n1_start"] + o["n1_step"] * s)
                for p in range(4):
                    a = T(4 * hh) + 8 * s + 2 * p
                    put([valu(f"v_mul_f32 v{a}, v{a}, v{ri}", rd=[a, ri], wr=[a]),
                         valu(f"v_mul_f32 v{a + 1}, v{a + 1}, v{ri}", rd=[a + 1, ri], wr=[a + 1])], after=mk[f"PVend{hh}{dt}"], before=before,
                        alt=[valu(f"v_pk_mul_f32 {vr(a, 2)}, {vr(a, 2)}, {vr(ri, 2)} op_sel_hi:[1,0]", rd=[a, a + 1, ri], wr=[a, a + 1])])
                for p in range(4):
                    a = T(4 * hh) + 8 * s + 2 * p
                    put(cvt(dst + 4 * s + p, a, a + 1), after=mk[f"PVend{hh}3"], before=before)
                put([salu(f"s_add_u32 s{S_T0}, s{S_OST}, {hh * 32768 + s * 4096}"), store4(dst + 4 * s, S_T0, o["ost_mod"], f"O{hh}")])

        def flag(e, tag, at):
            put([I("", "stamp", tag=f"pre{e}"), I("", "waitvm", tag=tag), I("", "stamp", tag=f"fl{e}"),
                 salu(f"s_add_u32 s{S_T1}, s{S_TAG}, {e}"), valu(f"v_mov_b32 v{V_FV}, s{S_T1}", wr=[V_FV]), salu("s_mov_b64 exec, 1")] +
                ([salu(f"s_add_u32 s{S_T1}, s{S_FLAGA}, {WS_FLAGS2}"),
                  I(f"buffer_store_dword v{V_FV}, v{V_ZERO}, {srd(SRD_WS)}, s{S_T1} offen", "vst", rd=[V_FV, V_ZERO])] if e < 3 else []) +
                [I(f"buffer_store_dword v{V_FV}, v{V_ZERO}, {srd(SRD_WS)}, s{S_FLAGA} offen sc1", "vst", rd=[V_FV, V_ZERO]),
                 salu("s_mov_b64 exec, -1")], after=at)

        maxes(0)
        exps(0, mk["st_PV0a"])
        maxes(1)
        exps(1, mk["st_PV1a"])
        norm(0)
        norm(1)
        for qd in range(4):
            d = T(2) + 4 * qd
            for t in range(2):
                for p in range(2):
                    a = T(t) + 4 * qd + 2 * p
                    put(cvt(d + 2 * t + p, a, a + 1), after=mk[f"L8end1{t}"], before=mk["acc0"])
            put([salu(f"s_add_u32 s{S_T0}, s{S_L8B}, {qd << 16}"), store4(d, S_T0, " sc1", "L8")], before=mk["acc2"])
        p0 = mk["st_P0a"]
        flag(1, "O0", p0 + o["e1_at"])
        flag(2, "O1", p0 + o["e2_at"])
        flag(3, "L8", p0 + o["e3_at"])
        put(valu(f"v_mbcnt_lo_u32_b32 v{V_TMP0}, -1, 0", wr=[V_TMP0]), after=p0 + o["own_at"])
        put(valu(f"v_and_b32 v{V_TMP0}, 7, v{V_TMP0}", rd=[V_TMP0], wr=[V_TMP0]))
        put(valu(f"v_lshlrev_b32 v{V_TMP0}, 10, v{V_TMP0}", rd=[V_TMP0], wr=[V_TMP0]))
        put(valu(f"v_xor_b32 v{V_TMP0}, s{S_FLAGA}, v{V_TMP0}", rd=[V_TMP0], wr=[V_TMP0]))
        put(I(f"buffer_load_dword v{V_TMP1}, v{V_TMP0}, {srd(SRD_WS)}, 0 offen offset:4 sc1", "vld", rd=[V_TMP0], wr=[V_TMP1]))
        put([salu(f"s_add_u32 s{S_T1}, s{S_TAG}, 1"), valu(f"v_subrev_u32 v{V_TMP1}, s{S_T1}, v{V_TMP1}", rd=[V_TMP1], wr=[V_TMP1]),
             valu(f"v_cmp_lt_u32 vcc, 6, v{V_TMP1}", rd=[V_TMP1]), salu("s_nop 0"), I("s_cbranch_vccnz L_ownspin", "br"), label("L_ownok"),
             salu(f"s_lshl_b32 s{S_DEC}, s{S_TAG}, 16"), salu(f"s_sub_u32 s{S_DEC}, 0, s{S_DEC}")],
            after=p0 + o["own_at"] + 36)
        for t in range(7):
            d = T(10) + 8 * (t % 4)
            lam, e = t >> 1, t & 1
            for p in range(8):
                put(cvt(d + p, T(t) + 2 * p, T(t) + 2 * p + 1), after=mk[f"fin{t}"])
                put(valu(f"v_pk_add_u16 v{d + p}, s{S_TAG}, v{d + p}", rd=[d + p], wr=[d + p]))
                if p == 0:
                    put([salu(f"s_add_u32 s{S_T2}, s{S_O}, {lam + 1}"), salu(f"s_and_b32 s{S_T2}, s{S_T2}, 3"), salu(f"s_lshl_b32 s{S_T2}, s{S_T2}, 18"),
                         salu(f"s_add_u32 s{S_T2}, s{S_T2}, s{S_PARTB}")] +
                        ([] if e else [salu(f"s_xor_b32 s{S_T2}, s{S_T2}, 0x20000")]))
                if p % 4 == 3:
                    put([salu(f"s_add_u32 s{S_T0}, s{S_T2}, {t * 8192 + (p >> 2) * 4096}"), store4(d + p - 3, S_T0, o["pst_mod"])])
        self.F = F

    def compute_stream(self, S):
        o, ms = self.o, self.ms
        la, n = o["la"], len(self.ms)
        loads_at = {}
        seen = set()
        for m, x in enumerate(ms):
            for ld in [x.b, x.a] + x.extra:
                if isinstance(ld, Load) and id(ld) not in seen:
                    seen.add(id(ld))
                    loads_at.setdefault(max(m - la, -1), []).append((ld, x.stage))
        first_pos = {}
        for pos in sorted(loads_at):
            for ld, st in loads_at[pos]:
                first_pos.setdefault(st, pos)
        flag_at = {}
        for st, pos in first_pos.items():
            if self.stages[st]["new"]:
                flag_at.setdefault(max(pos - 3, -1), []).append(st)
        ai = bi = pi = 0
        bases, checked, have_flag = {}, set(), set()
        self.spins = []
        F, fi = self.F, 0
        stage_first = {}
        for m, x in enumerate(ms):
            stage_first.setdefault(x.stage, m)
        stamp_at = {}
        if o["stamps"]:
            for st, m0 in stage_first.items():
                if o.get("only") is None or self.stages[st]["name"] in o["only"]:
                    stamp_at[m0] = self.stages[st]["name"]

        def do_loads(pos):
            nonlocal ai, bi, pi
            c = 0
            for st in flag_at.get(pos, []):
                S.emit(I(f"ds_read_b32 v{V_FLAG}, v{V_FA} offset:{LDS_READY + 32 * st}", "ldsr", rd=[V_FA], wr=[V_FLAG]))
                have_flag.add(st)
                c += 1
            for ld, st in loads_at.get(pos, []):
                if st not in checked:
                    checked.add(st)
                    if self.stages[st]["new"] and not o.get("noready"):
                        assert st in have_flag
                        S.emit(valu(f"v_cmp_ne_u32 vcc, 1, v{V_FLAG}", rd=[V_FLAG]))
                        S.emit(salu("s_nop 0"))
                        S.emit(I(f"s_cbranch_vccnz L_spin{st}", "br"))
                        S.emit(label(f"L_back{st}"))
                        self.spins.append(st)
                        c += 3
                g = ld.group
                key = (g.name, ld.pat)
                if key not in bases:
                    for k2 in [k2 for k2 in bases if self.G[k2[0]].last < st]:
                        del bases[k2]
                    r = [V_POOL + (pi + q) % NPOOL for q in range(NPOOL) if V_POOL + (pi + q) % NPOOL not in bases.values()][0]
                    pi = r - V_POOL + 1
                    bases[key] = r
                    S.emit(valu(f"v_add_u32 v{r}, {g.addr}, v{ld.pat}", rd=[ld.pat], wr=[r]))
                    c += 1
                breg = bases[key]
                if ld.ring == "A":
                    ld.reg = ARING + 4 * (ai % NA)
                    ai += 1
                elif ld.ring == "B":
                    ld.reg = BRING + 4 * (bi % NB)
                    bi += 1
                ld.issued = True
                if len(ld.offs) == 2:
                    for q, off in enumerate(ld.offs):
                        S.emit(I(f"ds_read_b64_tr_b16 {vr(ld.reg + 2 * q, 2)}, v{breg} offset:{off}", "ldsr", rd=[breg], wr=rng(ld.reg + 2 * q, 2)))
                        c += 1
                else:
                    S.emit(I(f"ds_read_b128 {vr(ld.reg, 4)}, v{breg} offset:{ld.offs[0]}", "ldsr", rd=[breg], wr=rng(ld.reg, 4)))
                    c += 1
            return c

        def emit_item(k, exposed=False):
            c = 0
            for x in (F[k][3] if exposed and F[k][3] else F[k][0]):
                if x.kind == "stamp":
                    if o["stamps"] and o.get("fstamps"):
                        self.stamp(S, x.tag)
                    continue
                S.emit(x)
                c += x.cost
            return c

        def forced(m):
            last = -1
            for k in range(fi, len(F)):
                if F[k][2] is not None and F[k][2] <= m:
                    last = k
            return last

        deferred, defer_until, defer_stage = [], None, None
        do_loads(-1)
        for m, x in enumerate(ms):
            lastforce = forced(m)
            while fi <= lastforce:
                assert F[fi][1] is None or F[fi][1] < m, (F[fi][0][0].text, F[fi][1], m)
                if defer_until == m and lastforce - fi < o["late_lead"]:
                    for pos in deferred:
                        do_loads(pos)
                    deferred, defer_until = [], None
                emit_item(fi, True)
                fi += 1
            if defer_until == m:
                for pos in deferred:
                    do_loads(pos)
                deferred, defer_until = [], None
            if o.get("mrange") and o["mrange"][0] <= m < o["mrange"][1] and (m - o["mrange"][0]) % o["mrange"][2] == 0:
                self.stamp(S, f"m{m}")
            if m in stamp_at:
                self.stamp(S, stamp_at[m])
            a = x.a.reg if isinstance(x.a, Load) else x.a
            b = x.b.reg if isinstance(x.b, Load) else x.b
            if x.extra:
                pass
            if o["pairwait"] and m % 2 == 0 and m + 1 < n:
                extra = rng(a, 4) + rng(b, 4)
                for ld in (ms[m + 1].a, ms[m + 1].b):
                    if isinstance(ld, Load) and getattr(ld, "issued", False):
                        extra += rng(ld.reg, 4)
                S.wait(lg=S._need(S.lg, set(extra)))
            S.emit(mfma(x.d, a, b, x.c0))
            c = 1
            if (m + 1 == n or ms[m + 1].stage != x.stage) and x.stage < self.max_free:
                S.emit(I(f"global_load_lds_dword v{V_ZERO}, s[{S_TAB}:{S_TAB + 1}] offset:{4 * (63 - x.stage)}", "vld", rd=[V_ZERO]))
                c += 1
            if o["late"] and defer_until is None:
                for st in flag_at.get(m, []):
                    m0 = stage_first[st]
                    if forced(m0) - fi + 1 > 3 * (m0 - m) + 24:
                        defer_until, defer_stage = m0, st
            if defer_until is not None:
                key = ("d", m)
                loads_at[key] = [e for e in loads_at.get(m, []) if e[1] >= defer_stage]
                loads_at[m] = [e for e in loads_at.get(m, []) if e[1] < defer_stage]
                if m in flag_at:
                    flag_at[key] = flag_at.pop(m)
                deferred.append(key)
            c += do_loads(m)
            while fi < len(F) and c < o["budget"]:
                after = F[fi][1]
                if after is not None and after + 2 > m:
                    break
                c += emit_item(fi)
                fi += 1
        if o["stamps"]:
            self.stamp(S, "end")
        while fi < len(F):
            emit_item(fi, True)
            fi += 1

    def stamp(self, S, name):
        if self.o.get("tiny"):
            return
        k = len(self.cnames)
        self.cnames.append(name)
        D = 5
        if k >= D:
            S.raw(f"v_writelane_b32 v{V_ST}, s{S_STAMP + 2 * ((k - D) % 6)}, {k - D}")
        S.raw(f"{self.tm} s[{S_STAMP + 2 * (k % 6)}:{S_STAMP + 2 * (k % 6) + 1}]")
        if name == "polled":
            S.raw("s_waitcnt lgkmcnt(0)")
            for q in range(max(0, k - D + 1), k + 1):
                S.raw(f"v_writelane_b32 v{V_ST}, s{S_STAMP + 2 * (q % 6)}, {q}")

    def lstamp(self, name):
        if self.o.get("tiny"):
            return ""
        k = len(self.lnames)
        self.lnames.append(name)
        return f"{self.tm} s[{S_STAMP}:{S_STAMP + 1}]\ns_waitcnt lgkmcnt(0)\nv_writelane_b32 v{240 + k // 64}, s{S_STAMP}, {k % 64}\n"

    def stamp_out(self, regs, idx):
        t = f"s_waitcnt vmcnt(0) lgkmcnt(0)\n{self.tm} s[{S_STAMP}:{S_STAMP + 1}]\ns_getreg_b32 s{S_STAMP + 4}, hwreg(HW_REG_XCC_ID)\ns_waitcnt lgkmcnt(0)\n"
        r = regs[-1]
        t += f"v_writelane_b32 v{regs[idx // 64]}, s{S_STAMP}, {idx % 64}\nv_writelane_b32 v{r}, s76, 59\nv_writelane_b32 v{r}, s72, 60\nv_writelane_b32 v{r}, s{S_STAMP}, 61\nv_writelane_b32 v{r}, s{S_STAMP + 4}, 62\n"
        t += f"s_lshl_b32 s{S_T0}, s2, 3\ns_add_u32 s{S_T0}, s{S_T0}, s{S_WAVE}\ns_lshl_b32 s{S_T0}, s{S_T0}, 9\ns_add_u32 s{S_T0}, s{S_T0}, {WS_STAMP}\n"
        t += "v_mbcnt_lo_u32_b32 v1, -1, 0\nv_mbcnt_hi_u32_b32 v1, -1, v1\nv_lshlrev_b32 v1, 2, v1\n"
        for k, r in enumerate(regs):
            t += f"buffer_store_dword v{r}, v1, {srd(SRD_WS)}, s{S_T0} offen offset:{256 * k + (256 if len(regs) == 1 else 0)}\n"
        return t

    def spin_guard(self, back):
        return (f"s_add_u32 s{S_SPIN}, s{S_SPIN}, 1\ns_cmp_gt_u32 s{S_SPIN}, {self.o['spin_limit']}\n"
                f"s_cbranch_scc1 {back}\n")

    SIZES = {SRD_X: 1179648, SRD_K: 8388608, SRD_V: 8388608, SRD_WQ: 4718592, SRD_WO: 4718592,
             SRD_WS: 268435456, SRD_OUT: 2359296, SRD_DBG: 256}
    LAND = {SRD_K: 60, SRD_V: 62, SRD_OUT: 68, SRD_DBG: 70}

    def srd_build(self, regs):
        t = ""
        for r in regs:
            if r in self.LAND:
                t += f"s_mov_b64 s[{r}:{r + 1}], s[{self.LAND[r]}:{self.LAND[r] + 1}]\n"
            t += f"s_mov_b32 s{r + 2}, {self.SIZES[r]}\ns_mov_b32 s{r + 3}, 0x20000\n"
        return t

    def ids(self):
        return f"""s_bfe_u32 s{S_P}, s2, 0x10002
s_lshl_b32 s{S_COMP}, s{S_P}, 3
s_add_u32 s{S_COMP}, s{S_COMP}, s{S_B}
s_lshl_b32 s{S_CID}, s{S_COMP}, 2
s_add_u32 s{S_CID}, s{S_CID}, s{S_O}
s_lshl_b32 s{S_CID}, s{S_CID}, 2
s_add_u32 s{S_CID}, s{S_CID}, s{S_J}
s_mov_b32 s{S_SPIN}, 0
"""

    def prologue(self):
        st = self.o["stamps"]
        t = "s_memrealtime s[72:73]\n" if st else ""
        t += f"""s_cmp_ge_u32 s2, 256
s_cbranch_scc1 L_end
s_and_b32 s{S_T0}, s2, 4
s_mul_i32 s{S_T0}, s{S_T0}, 10
s_add_u32 s{S_T2}, s0, s{S_T0}
s_addc_u32 s{S_T3}, s1, 0
s_load_dwordx2 s[{SRD_X}:{SRD_X + 1}], s[{S_T2}:{S_T3}], 0
s_load_dwordx2 s[{SRD_WQ}:{SRD_WQ + 1}], s[{S_T2}:{S_T3}], 24
s_load_dwordx4 s[60:63], s[{S_T2}:{S_T3}], 8
s_load_dwordx2 s[{SRD_WO}:{SRD_WO + 1}], s[{S_T2}:{S_T3}], 32
s_load_dwordx4 s[68:71], s[0:1], 80
s_load_dwordx2 s[{SRD_WS}:{SRD_WS + 1}], s[0:1], 96
v_readfirstlane_b32 s{S_WAVE}, v0
v_and_b32 v0, 63, v0
s_lshr_b32 s{S_B}, s2, 5
s_lshr_b32 s{S_WAVE}, s{S_WAVE}, 6
s_and_b32 s{S_W}, s{S_WAVE}, 3
s_cmp_lt_u32 s{S_WAVE}, 4
s_cbranch_scc1 L_cstub
"""
        return t

    def cstub(self):
        st = self.o["stamps"]
        return f"""L_cstub:
s_getpc_b64 s[{S_TAB}:{S_TAB + 1}]
L_pc2:
; clear the hand-off words in LDS
v_mov_b32 v16, 0
v_mov_b32 v17, 0
v_mov_b32 v18, 0
v_mov_b32 v19, 0
s_lshl_b32 s{S_T0}, s{S_W}, 10
v_lshl_add_u32 v{V_LIN}, v0, 4, s{S_T0}
ds_write_b128 v{V_LIN}, v[16:19]
s_cmp_lg_u32 s{S_WAVE}, 0
s_cbranch_scc1 L_notouch
s_bfe_u32 s{S_T0}, s2, 0x30003
s_mul_i32 s{S_T0}, s{S_T0}, (L_codeend-L_pc2+1023)/1024
v_add_u32 v1, s{S_T0}, v0
v_min_u32 v1, (L_codeend-L_pc2-4)/128, v1
v_lshlrev_b32 v1, 7, v1
global_load_dword v{V_FV}, v1, s[{S_TAB}:{S_TAB + 1}]
L_notouch:
s_add_u32 s{S_TAB}, s{S_TAB}, L_ones-L_pc2
s_addc_u32 s{S_TAB + 1}, s{S_TAB + 1}, 0
s_waitcnt lgkmcnt(0)
{"s_memrealtime s[76:77]" if st else ""}
s_barrier
s_branch L_compute
"""

    def compute_prologue(self):
        t = f"""s_setprio {self.o['cprio']}
s_and_b32 s{S_O}, s2, 3
s_bfe_u32 s{S_J}, s2, 0x20003
v_mov_b32 v{V_ZERO}, 0
v_and_b32 v1, 31, v0
v_lshrrev_b32 v2, 5, v0
v_bfe_u32 v3, v0, 2, 2
v_and_b32 v4, 1, v0
v_lshlrev_b32 v4, 1, v4
v_bfe_u32 v5, v0, 1, 1
v_or_b32 v4, v4, v5
v_bfe_u32 v5, v0, 4, 1
v_lshl_add_u32 v4, v5, 2, v4
v_lshlrev_b32 v4, 3, v4
v_lshl_add_u32 v4, v3, 6, v4
v_lshl_add_u32 v{V_TR}, v2, 11, v4
v_lshl_add_u32 v{V_TR8}, v2, 10, v4
v_lshrrev_b32 v6, 3, v1
v_lshlrev_b32 v6, 10, v6
v_and_b32 v7, 7, v1
v_lshl_add_u32 v6, v7, 6, v6
v_xor_b32 v7, v3, v2
v_lshl_add_u32 v6, v7, 4, v6
s_lshl_b32 s{S_T0}, s{S_W}, 12
v_add_u32 v{V_XB0}, s{S_T0}, v6
v_xor_b32 v{V_XB1}, 32, v{V_XB0}
v_and_b32 v6, 7, v0
v_lshlrev_b32 v{V_FA}, 2, v6
s_mul_i32 s{S_T0}, s{S_W}, 516
s_add_u32 m0, s{S_T0}, {LDS_DONE}
v_and_b32 v5, 19, v1
v_bfe_u32 v6, v1, 2, 1
v_lshl_add_u32 v5, v6, 3, v5
v_bfe_u32 v6, v1, 3, 1
v_lshl_add_u32 v5, v6, 2, v5
; K pattern
v_lshrrev_b32 v6, 2, v5
v_lshlrev_b32 v7, 10, v6
v_and_b32 v8, 3, v5
v_lshl_add_u32 v7, v8, 6, v7
v_and_b32 v6, 3, v6
v_xor_b32 v6, v6, v2
v_lshl_add_u32 v{V_KB0}, v6, 4, v7
v_xor_b32 v{V_KB1}, 32, v{V_KB0}
v_mul_u32_u24 v6, {4 * 2304}, v2
v_lshl_add_u32 v{V_OUTA}, v5, 1, v6
s_mov_b32 s{S_SCALE}, 0x3e0293ee
"""
        t += self.ids() + self.srd_build([SRD_WS, SRD_OUT, SRD_DBG])
        t += f"""s_lshl_b32 s{S_INBOX}, s{S_CID}, 16
s_add_u32 s{S_OST}, s{S_INBOX}, {WS_O}
s_add_u32 s{S_INBOX}, s{S_INBOX}, {WS_PART}
s_andn2_b32 s{S_PARTB}, s{S_CID}, 12
s_lshl_b32 s{S_PARTB}, s{S_PARTB}, 16
s_add_u32 s{S_PARTB}, s{S_PARTB}, {WS_PART}
s_lshl_b32 s{S_FLAGA}, s{S_CID}, 2
s_add_u32 s{S_FLAGA}, s{S_FLAGA}, s{S_W}
s_lshl_b32 s{S_FLAGA}, s{S_FLAGA}, 7
s_lshl_b32 s{S_L8B}, s{S_COMP}, 4
s_add_u32 s{S_L8B}, s{S_L8B}, s{S_W}
s_lshl_b32 s{S_L8B}, s{S_L8B}, 4
s_and_b32 s{S_T0}, s{S_CID}, 15
s_add_u32 s{S_L8B}, s{S_L8B}, s{S_T0}
s_sub_u32 s{S_L8B}, s{S_L8B}, s{S_W}
s_lshl_b32 s{S_L8B}, s{S_L8B}, 10
s_add_u32 s{S_L8B}, s{S_L8B}, {WS_L8}
s_lshl_b32 s{S_OUTB}, s{S_B}, 2
s_add_u32 s{S_OUTB}, s{S_OUTB}, s{S_W}
s_mul_i32 s{S_OUTB}, s{S_OUTB}, {32 * 2304}
s_mul_i32 s{S_T0}, s{S_P}, 1152
s_add_u32 s{S_OUTB}, s{S_OUTB}, s{S_T0}
s_and_b32 s{S_T0}, s{S_J}, 1
s_lshl_b32 s{S_T0}, s{S_T0}, 9
s_add_u32 s{S_OUTB}, s{S_OUTB}, s{S_T0}
s_bfe_u32 s{S_T0}, s{S_CID}, 0x30001
s_lshl_b32 s{S_T0}, s{S_T0}, 6
s_add_u32 s{S_OUTB}, s{S_OUTB}, s{S_T0}
s_lshl_b32 s{S_T4}, s{S_COMP}, 2
; leader wave: fetch the hand-off words an earlier launch left (the tag is chosen from them a little later)
s_and_b32 s{S_LEAD}, s{S_CID}, 15
s_or_b32 s{S_LEAD}, s{S_LEAD}, s{S_WAVE}
s_cmp_lg_u32 s{S_LEAD}, 0
s_cbranch_scc1 L_noscan
v_lshlrev_b32 v1, 7, v0
s_lshl_b32 s{S_T0}, s{S_COMP}, 13
buffer_load_dwordx2 v[{V_MX0}:{V_MX1}], v1, {srd(SRD_WS)}, s{S_T0} offen sc1
s_add_u32 s{S_T0}, s{S_T0}, {WS_FLAGS2}
buffer_load_dword v{V_MC}, v1, {srd(SRD_WS)}, s{S_T0} offen sc1
L_noscan:
"""
        return t

    def compute_tail(self, S):
        o = self.o
        if o["stamps"]:
            self.stamp(S, "sent")
        NEW = T(0)
        OLD = rng(T(4), 32) + rng(T(8), 24)
        X = ARING
        zst = len(self.stages) - 1
        S.emit(I("", "waitlg0"))
        S.emit(salu("s_nop 7"))
        phases = [(0, 8), (8, 14)]

        def loads(k0, k1):
            for k in range(k0, k1):
                S.raw(f"s_add_u32 s{S_T1}, s{S_INBOX}, {k * 4096}")
                S.raw(f"buffer_load_dwordx4 {vr(NEW + 4 * k, 4)}, v{V_LIN}, {srd(SRD_WS)}, s{S_T1} offen{o['pld_mod']}")

        def check(k0, k1, younger):
            for k in range(k0, k1):
                S.raw(f"s_waitcnt vmcnt({k1 - 1 - k + younger}) lgkmcnt(0)")
                for q in range(4):
                    S.raw(f"v_xor_b32 v{X + q}, v{NEW + 4 * k + q}, v{OLD[4 * k + q]}")
                if k == k0:
                    S.raw(f"v_min_u32 v{X + 4}, v{X}, v{X + 1}")
                else:
                    S.raw(f"v_min3_u32 v{X + 4}, v{X + 4}, v{X}, v{X + 1}")
                S.raw(f"v_min3_u32 v{X + 4}, v{X + 4}, v{X + 2}, v{X + 3}")
            S.raw(f"v_cmp_eq_u32 vcc, 0, v{X + 4}")

        def accumulate(k0, k1):
            for k in range(k0, k1):
                for q in range(4):
                    s = NEW + 4 * k + q
                    a = T(7) + 8 * (k & 1) + 2 * q
                    y = X + 6 + 2 * (q & 1)
                    S.raw(f"v_lshl_add_u32 v{y}, v{s}, 16, s{S_DEC}")
                    S.raw(f"v_and_b32 v{y + 1}, 0xffff0000, v{s}")
                    S.raw(f"v_pk_add_f32 {vr(a, 2)}, {vr(a, 2)}, {vr(y, 2)}")

        def retry(name, again):
            S.raw("s_nop 1")
            S.raw(f"s_cbranch_vccz {name}_ok")
            S.raw(f"s_bitcmp1_b32 s{S_GOT}, 31")
            S.raw(f"s_cbranch_scc1 {name}_ok")
            S.raw(f"s_add_u32 s{S_GOT}, s{S_GOT}, 1")
            S.raw(f"s_cmp_lt_u32 s{S_GOT}, 48")
            S.raw(f"s_cbranch_scc1 {again}")
            S.raw(f"s_call_b64 s[{S_LINK}:{S_LINK + 1}], L_fslow")
            S.raw(f"s_branch {again}")

        loads(0, 14)
        S.raw(f"s_mov_b32 s{S_GOT}, 0")
        S.out.append("L_zspin:")
        S.raw(f"ds_read_b32 v{V_FLAG}, v{V_FA} offset:{LDS_READY + 32 * zst}")
        for q, s in enumerate("abcd"):
            S.raw(f"v_add_u32 v{V_POOL + q}, {self.G['Z' + s].addr}, v{V_LIN}")
        S.raw("s_waitcnt lgkmcnt(0)")
        S.raw(f"v_cmp_ne_u32 vcc, 1, v{V_FLAG}")
        S.raw("s_nop 1")
        S.raw("s_cbranch_vccz L_zok")
        S.out.append(self.spin_guard("L_zok") + "s_branch L_zspin")
        S.out.append("L_zok:")
        for k in range(14):
            S.raw(f"ds_read_b128 {vr(OLD[4 * k], 4)}, v{V_POOL + k // 4} offset:{(k % 4) * 4096}")
        check(0, 8, 6)
        S.raw(f"s_add_u32 s{S_T1}, s{S_TAG}, 4")
        S.raw(f"v_mov_b32 v{V_FV}, s{S_T1}")
        S.raw("s_mov_b64 exec, 1")
        S.raw(f"buffer_store_dword v{V_FV}, v{V_ZERO}, {srd(SRD_WS)}, s{S_FLAGA} offen sc1")
        S.raw("s_mov_b64 exec, -1")
        S.raw("s_cbranch_vccz L_fa_ok")
        S.out.append("L_fa:")
        loads(0, 8)
        check(0, 8, 0)
        retry("L_fa", "L_fa")
        S.out.append("L_fa_ok:")
        accumulate(0, 8)
        check(8, 14, 1)
        S.raw("s_nop 0")
        S.raw("s_cbranch_vccz L_fb_ok")
        S.out.append("L_fb:")
        loads(8, 14)
        check(8, 14, 0)
        retry("L_fb", "L_fb")
        S.out.append("L_fb_ok:")
        if o["stamps"]:
            self.stamp(S, "polled")
        accumulate(8, 14)
        for p in range(8):
            a = T(7) + 2 * p
            d = T(6) + p
            S.raw(f"s_add_u32 s{S_T0}, s{S_OUTB}, {(8 * (p >> 1) + 2 * (p & 1)) * 2304}")
            S.raw(f"v_cvt_pk_bf16_f32 v{d}, v{a}, v{a + 1}")
            S.raw(f"buffer_store_short v{d}, v{V_OUTA}, {srd(SRD_OUT)}, s{S_T0} offen{o['out_mod']}")
            S.raw(f"buffer_store_short_d16_hi v{d}, v{V_OUTA}, {srd(SRD_OUT)}, s{S_T0} offen offset:2304{o['out_mod']}")

    def loader(self):
        o = self.o
        VX, VW, VV, VK, VU0, VU1, VE, VF, VL, VDA, VTG, VPOLL, VPOLL2, VT, VZ, VRD, VONE = range(10, 27)
        VONE = 28
        cm = o["common"]
        nrot = 9 - cm
        first = f"""; x: rr*1152 + kh*64 + (c^phi)*16 + l*9216
v_bfe_u32 v5, v0, 2, 3
v_mul_u32_u24 v6, 1152, v5
v_lshrrev_b32 v3, 5, v0
v_lshl_add_u32 v6, v3, 6, v6
v_lshrrev_b32 v7, 2, v5
s_lshl_b32 s{S_T0}, s{S_W}, 1
v_xor_b32 v7, s{S_T0}, v7
v_xor_b32 v7, v7, v0
v_and_b32 v7, 3, v7
v_lshl_add_u32 v6, v7, 4, v6
s_mul_i32 s{S_T0}, s{S_W}, 9216
v_add_u32 v{VX}, s{S_T0}, v6
s_lshl_b32 s{S_L1024}, s{S_W}, 10
s_mul_i32 s{S_XB}, s{S_B}, 147456
s_mov_b32 s{SRD_X + 2}, {self.SIZES[SRD_X]}
s_mov_b32 s{SRD_X + 3}, 0x20000
{"s_memrealtime s[76:77]" if o["stamps"] else ""}
s_waitcnt lgkmcnt(0)
"""
        second = f"""; wq: r*8192 + t*64 + c*16 + l*32768
v_bfe_u32 v1, v0, 2, 2
v_and_b32 v2, 3, v0
v_lshlrev_b32 v4, 2, v0
v_and_b32 v4, 0xc0, v4
v_lshl_add_u32 v4, v2, 4, v4
s_lshl_b32 s{S_T0}, s{S_W}, 15
v_lshl_add_u32 v{VW}, v1, 13, v4
v_add_u32 v{VW}, s{S_T0}, v{VW}
s_and_b32 s{S_O}, s2, 3
s_bfe_u32 s{S_J}, s2, 0x20003
s_lshl_b32 s{S_T0}, s{S_O}, 3
s_lshl_b32 s{S_T1}, s{S_J}, 1
s_add_u32 s{S_HD}, s{S_T0}, s{S_T1}
s_lshl_b32 s{S_WQB}, s{S_HD}, 8
s_mov_b32 s{SRD_WQ + 2}, {self.SIZES[SRD_WQ]}
s_mov_b32 s{SRD_WQ + 3}, 0x20000
"""
        third = f"""s_getpc_b64 s[{S_TAB}:{S_TAB + 1}]
L_pc1:
s_add_u32 s{S_TAB}, s{S_TAB}, L_ones-L_pc1
s_addc_u32 s{S_TAB + 1}, s{S_TAB + 1}, 0
v_mov_b32 v{VZ}, 0
s_lshl_b32 s{S_RDY}, s{S_W}, 3
s_lshl_b32 s{S_ROT}, s{S_J}, 1
s_add_u32 s{S_ROT}, s{S_ROT}, s{S_B}
s_sub_u32 s{S_T0}, s{S_ROT}, {nrot}
s_cmp_ge_u32 s{S_ROT}, {nrot}
s_cselect_b32 s{S_ROT}, s{S_T0}, s{S_ROT}
s_barrier
"""
        assert nrot >= 7
        rest = self.ids() + self.srd_build([SRD_K, SRD_V, SRD_WO, SRD_WS, SRD_OUT, SRD_DBG]) + f"""; V: r*256 + t*64 + c*16 + l*1024
v_lshl_add_u32 v{VV}, v1, 8, v4
v_add_u32 v{VV}, s{S_L1024}, v{VV}
; K: same with c^l
s_lshl_b32 s{S_T0}, s{S_W}, 4
v_xor_b32 v{VK}, s{S_T0}, v{VV}
; wo: r*1152 + column(t)*64 + c*16 + l*4608, column(t) = 2*((o+1+(t>>1))&3) + ((t&1)^1^(j>>1))
v_mul_u32_u24 v6, 1152, v1
v_lshl_add_u32 v6, v2, 4, v6
s_mul_i32 s{S_T0}, s{S_W}, 4608
v_add_u32 v6, s{S_T0}, v6
s_lshr_b32 s{S_T1}, s{S_J}, 1
s_xor_b32 s{S_T1}, s{S_T1}, 1
v_bfe_u32 v7, v0, 4, 1
v_xor_b32 v7, s{S_T1}, v7
v_lshl_add_u32 v6, v7, 6, v6
s_add_u32 s{S_T0}, s{S_O}, 1
v_add_u32 v8, s{S_T0}, v3
v_and_b32 v8, 3, v8
v_lshl_add_u32 v{VU0}, v8, 7, v6
v_xor_b32 v8, 2, v8
v_lshl_add_u32 v{VU1}, v8, 7, v6
; 128-byte rows: (4*rg2+r)*1152 + t*64 + c*16 + l*9216
v_lshl_add_u32 v8, v3, 2, v1
v_mul_u32_u24 v6, 1152, v8
v_lshl_add_u32 v6, v2, 4, v6
s_mul_i32 s{S_T0}, s{S_W}, 9216
v_add_u32 v6, s{S_T0}, v6
v_lshl_add_u32 v{VF}, v7, 6, v6
v_bfe_u32 v7, v0, 4, 1
v_lshl_add_u32 v{VE}, v7, 6, v6
v_lshlrev_b32 v6, 4, v0
v_add_u32 v{VL}, s{S_L1024}, v6
v_mul_u32_u24 v{VDA}, 516, v2
s_lshl_b32 s{S_KVB}, s{S_B}, 5
s_add_u32 s{S_KVB}, s{S_KVB}, s{S_HD}
s_lshl_b32 s{S_KVB}, s{S_KVB}, 15
s_mul_i32 s{S_OWNB}, s{S_HD}, {128 * 1152}
s_and_b32 s{S_T0}, s{S_J}, 1
s_lshl_b32 s{S_WOB}, s{S_T0}, 9
s_mov_b32 s{S_TAG}, 0
s_mov_b32 s{S_NEED}, 1
s_mov_b32 s{S_PCNT}, 0
s_{o['varsel']}
v_mov_b32 v{VPOLL}, 0
v_mov_b32 v{VPOLL2}, 0
v_mov_b32 v{VRD}, s{S_RDY}
v_mov_b32 v{VONE}, 1
v_mov_b32 v{VONE + 1}, 1
"""
        t = first
        vm, known, gi = [], 0, -1
        pend_pub, tag_at, z_at = [], None, None
        slp = f"s_sleep {o['lsleep']}\n" if o["lsleep"] else ""
        curblk, seen_e, polling, quiet = None, 0, False, False
        zreg = {f"Z{s}": 32 + 16 * q for q, s in enumerate("abcd")}

        def gettag():
            nonlocal tag_at
            if tag_at is None:
                return ""
            r = f"""s_waitcnt vmcnt({min(63, len(vm) - tag_at)})
v_readfirstlane_b32 s{S_TAG}, v{VTG}
s_nop 1
s_cmp_lg_u32 s{S_TAG}, 0
s_cbranch_scc1 L_ltagok
s_call_b64 s[{S_LINK}:{S_LINK + 1}], L_waittag
L_ltagok:
"""
            tag_at = None
            return r

        for pos, item in enumerate(self.items):
            name, _, var = item.partition("/")
            skip0 = f"s_cmp_lg_u32 s{S_VAR}, {int(var)}\ns_cbranch_scc1 L_skip{pos}\n" if var else ""
            skip1 = f"L_skip{pos}:\n" if var else ""
            if name == "@two":
                t += skip0 + f"""v_lshrrev_b32 v1, 2, v0
s_lshl_b32 s{S_T0}, s{S_W}, 4
v_add_u32 v1, s{S_T0}, v1
v_mul_u32_u24 v1, 1152, v1
v_and_b32 v8, 3, v0
v_lshl_add_u32 v1, v8, 7, v1
s_andn2_b32 s{S_T0}, s{S_HD}, 3
s_lshl_b32 s{S_T0}, s{S_T0}, 1
s_add_u32 s{S_T0}, s{S_T0}, s{S_B}
s_mul_i32 s{S_T0}, s{S_T0}, {64 * 1152}
s_add_u32 s{S_T0}, s{S_T0}, s{S_WOB}
buffer_load_dword v{VT}, v1, {srd(SRD_WO)}, s{S_T0} offen{o['two_mod']}
v_and_b32 v1, 7, v0
s_lshl_b32 s{S_T0}, s{S_W}, 3
v_add_u32 v1, s{S_T0}, v1
v_mul_u32_u24 v1, 1152, v1
s_mul_i32 s{S_T0}, s{S_B}, {32 * 1152}
s_add_u32 s{S_T0}, s{S_T0}, s{S_OWNB}
s_add_u32 s{S_T0}, s{S_T0}, 1024
s_mov_b64 exec, 0xff
buffer_load_dword v{VT}, v1, {srd(SRD_WO)}, s{S_T0} offen{o['two_mod']}
s_mov_b64 exec, -1
""" + skip1
                continue
            if name == "@tag":
                t += f"s_lshl_b32 s{S_T0}, s{S_COMP}, 2\nbuffer_load_dword v{VTG}, v{VZ}, {srd(SRD_DBG)}, s{S_T0} offen sc1\n"
                vm.append("tag")
                tag_at = len(vm)
                continue
            if name == "@zflag":
                t += gettag() + f"""s_waitcnt vmcnt({min(63, len(vm) - z_at)})
s_add_u32 s{S_T1}, s{S_TAG}, 1
s_lshl_b32 s{S_T0}, s{S_CID}, 2
s_add_u32 s{S_T0}, s{S_T0}, s{S_W}
s_lshl_b32 s{S_T0}, s{S_T0}, 7
v_mov_b32 v4, s{S_T1}
s_mov_b64 exec, 1
buffer_store_dword v4, v{VZ}, {srd(SRD_WS)}, s{S_T0} offen offset:4 sc1
s_mov_b64 exec, -1
"""
                vm.append("zf")
                continue
            mode = ""
            if name[1] == ":":
                mode, name = name[0], name[2:]
            g = self.G[name]
            k, kw = g.kind, g.kw
            npc = 2 if name == "Zd" else 4
            t += f"; ---- {pos} {item} slot {g.slot} free_req {g.free_req} need {g.need}\n"
            if mode == "R":
                t += f"s_lshl_b32 s{S_T0}, s{S_CID}, 16\n"
                for u in range(npc):
                    d = zreg[name] + 4 * u
                    t += f"s_add_u32 s{S_SOFF}, s{S_T0}, {WS_PART + kw['sub'] * 16384 + u * 4096}\n"
                    t += f"buffer_load_dwordx4 v[{d}:{d + 3}], v{VL}, {srd(SRD_WS)}, s{S_SOFF} offen{o['pre_mod']}\n"
                    vm.append("z")
                z_at = len(vm)
                continue
            gi += 1
            t += skip0
            if g.free_req > known and not o.get('nofree'):
                off = LDS_DONE + 4 * (63 - (g.free_req - 1))
                if not var:
                    known = g.free_req
                ps = f"s_call_b64 s[{S_LINK}:{S_LINK + 1}], L_pollstep\n" if polling else slp
                t += f"L_fchk{pos}:\nds_read_b32 v4, v{VDA} offset:{off}\ns_waitcnt lgkmcnt(0)\nv_cmp_ne_u32 vcc, 1, v4\ns_nop 1\ns_cbranch_vccz L_fok{pos}\n"
                t += ps + self.spin_guard(f"L_fok{pos}") + f"s_branch L_fchk{pos}\nL_fok{pos}:\n"
            if mode == "D":
                if not quiet:
                    t += "s_waitcnt vmcnt(0)\n"
                    quiet = True
                t += f"v_add_u32 v5, {g.addr}, v{VL}\n"
                for u in range(npc):
                    d = zreg[name] + 4 * u
                    t += f"ds_write_b128 v5, v[{d}:{d + 3}] offset:{u * 4096}\n"
                if name == "Zd":
                    t += f"s_mov_b64 exec, 1\nds_write_b64 v{VRD}, v[{VONE}:{VONE + 1}] offset:{LDS_READY + 32 * g.need}\ns_mov_b64 exec, -1\n"
                continue
            if k == "o" and kw["h"] + 1 > seen_e:
                e = seen_e = kw["h"] + 1
                t += gettag() + f"""L_rw{pos}:
s_cmp_gt_u32 s{S_NEED}, {e}
s_cbranch_scc1 L_rok{pos}
s_call_b64 s[{S_LINK}:{S_LINK + 1}], L_pollstep
""" + self.spin_guard(f"L_rok{pos}") + f"s_branch L_rw{pos}\nL_rok{pos}:\n"
                polling = e == 1
            if k in ("x", "wq") and kw["i"] != curblk:
                curblk = kw["i"]
                if curblk >= cm:
                    t += f"s_add_u32 s{S_BLK}, s{S_ROT}, {cm}\ns_add_u32 s{S_ROT}, s{S_ROT}, 1\ns_cmp_eq_u32 s{S_ROT}, {nrot}\ns_cselect_b32 s{S_ROT}, 0, s{S_ROT}\n"
            gb = S_GB
            if k == "x":
                v, r, offs, mod = [VX] * 4, SRD_X, [u * 36864 for u in range(4)], o["x_mod"]
                if kw["i"] < cm:
                    gb, offs = S_XB, [q + kw["i"] * 128 for q in offs]
                else:
                    t += f"s_lshl_b32 s{S_GB}, s{S_BLK}, 7\ns_add_u32 s{S_GB}, s{S_GB}, s{S_XB}\n"
            elif k == "wq":
                v, r, mod = [VW] * 4, SRD_WQ, o["wq_mod"]
                offs = [kw["sub"] * 32 * 8192 + (u & 1) * 16 * 8192 + (u >> 1) * 256 for u in range(4)]
                if kw["i"] < cm:
                    gb, offs = S_WQB, [q + (kw["i"] << 19) for q in offs]
                else:
                    t += f"s_lshl_b32 s{S_GB}, s{S_BLK}, 19\ns_add_u32 s{S_GB}, s{S_GB}, s{S_WQB}\n"
            elif k in ("k", "v"):
                gb = S_KVB
                v, r = ([VK] * 4, SRD_K) if k == "k" else ([VV] * 4, SRD_V)
                offs, mod = [kw["h"] * 32768 + kw["sub"] * 16384 + u * 4096 for u in range(4)], o["kv_mod"]
            elif k in ("wo", "fin"):
                n = kw["n"] if k == "wo" else 3
                if n < 2:
                    t += f"s_add_u32 s{S_GB}, s{S_OWNB}, s{S_WOB}\n"
                else:
                    t += f"s_xor_b32 s{S_GB}, s{S_HD}, 2\ns_mul_i32 s{S_GB}, s{S_GB}, {128 * 1152}\ns_add_u32 s{S_GB}, s{S_GB}, s{S_WOB}\n"
                r, mod = SRD_WO, o["wo_mod"]
                if k == "wo":
                    v = [VU0, VU0, VU1, VU1]
                    offs = [((n & 1) * 128 + kw["sub"] * 32 + (u & 1) * 16) * 1152 for u in range(4)]
                else:
                    t += f"s_add_u32 s{S_T0}, s{S_O}, {kw['sub'] + 1}\ns_and_b32 s{S_T0}, s{S_T0}, 3\ns_lshl_b32 s{S_T0}, s{S_T0}, 7\ns_add_u32 s{S_GB}, s{S_GB}, s{S_T0}\n"
                    v, offs = [VF] * 4, [128 * 1152 + u * 36864 for u in range(4)]
            elif k == "l8":
                gb = S_OWNB
                v, r, offs, mod = [VE] * 4, SRD_WO, [kw["h"] * 128 * 1152 + 1024 + u * 36864 for u in range(4)], o["wo_mod"]
            elif k == "o":
                t += f"s_xor_b32 s{S_GB}, s{S_CID}, 1\ns_lshl_b32 s{S_GB}, s{S_GB}, 16\n"
                v, r, offs, mod = [VL] * 4, SRD_WS, [WS_O + kw["h"] * 32768 + kw["sub"] * 16384 + u * 4096 for u in range(4)], o["o_mod"]
            for u in range(4):
                t += f"s_add_u32 m0, s{S_L1024}, {g.addr + u * 4096}\ns_add_u32 s{S_SOFF}, s{gb}, {offs[u]}\n"
                t += f"buffer_load_dwordx4 v{v[u]}, {srd(r)}, s{S_SOFF} offen{mod} lds\n"
                if not var:
                    vm.append(g.name)
            pend_pub.append(g)
            if gi == 0:
                t += second
                continue
            if gi == 1:
                t += third
            for pg in pend_pub:
                new = self.stages[pg.need]["new"]
                t += f"s_add_u32 m0, s{S_RDY}, {LDS_READY + 32 * pg.need + 4 * new.index(pg)}\ns_mov_b64 exec, {3 if len(new) == 1 else 1}\n"
                t += f"global_load_lds_dword v{VZ}, s[{S_TAB}:{S_TAB + 1}]\ns_mov_b64 exec, -1\n"
                if not var:
                    vm.append("f")
            pend_pub = []
            if gi == 2:
                t += "s_branch L_lrest\n" + self.cstub() + "L_lrest:\n" + rest
                if o["stamps"]:
                    t += self.lstamp("start")
            if gi > 2:
                t += f"s_waitcnt vmcnt({o['thr']})\n"
                if o["stamps"] and not var and (o.get("only") is None or g.name in o["only"]):
                    t += self.lstamp(g.name)
            t += skip1
        t += f"""s_cmp_lg_u32 s{S_W}, 0
s_cbranch_scc1 L_ldone
v_and_b32 v1, 15, v0
s_lshl_b32 s{S_T0}, s{S_COMP}, 4
v_add_u32 v1, s{S_T0}, v1
v_lshlrev_b32 v1, 2, v1
v_add_u32 v1, s{S_J}, v1
v_lshlrev_b32 v1, 7, v1
s_add_u32 s{S_T1}, s{S_TAG}, 3
L_l8poll:
buffer_load_dword v2, v1, {srd(SRD_WS)}, 0 offen sc1
s_waitcnt vmcnt(0)
v_subrev_u32 v2, s{S_T1}, v2
v_cmp_lt_u32 vcc, 4, v2
s_nop 1
s_cbranch_vccz L_l8ok
s_sleep 2
""" + self.spin_guard("L_l8ok") + f"""s_branch L_l8poll
L_l8ok:
s_lshl_b32 s{S_T0}, s{S_CID}, 14
s_add_u32 s{S_T0}, s{S_T0}, {WS_L8}
"""
        R0 = 100
        for c in range(16):
            if c and c % 4 == 0:
                t += f"s_add_u32 s{S_T0}, s{S_T0}, 4096\n"
            t += f"buffer_load_dwordx4 v[{R0 + 4 * c}:{R0 + 3 + 4 * c}], v{VL}, {srd(SRD_WS)}, s{S_T0} offen offset:{(c % 4) * 1024} sc1\n"
        t += f"""v_and_b32 v1, 31, v0
v_lshrrev_b32 v2, 5, v0
v_and_b32 v5, 19, v1
v_bfe_u32 v6, v1, 2, 1
v_lshl_add_u32 v5, v6, 3, v5
v_bfe_u32 v6, v1, 3, 1
v_lshl_add_u32 v5, v6, 2, v5
v_mul_u32_u24 v6, {4 * 2304}, v2
v_lshl_add_u32 v9, v5, 1, v6
s_lshl_b32 s{S_T0}, s{S_B}, 2
s_add_u32 s{S_T0}, s{S_T0}, s{S_J}
s_lshl_b32 s{S_T0}, s{S_T0}, 2
s_add_u32 s{S_T0}, s{S_T0}, s{S_O}
s_mul_i32 s{S_T0}, s{S_T0}, {8 * 2304}
s_mul_i32 s{S_T1}, s{S_P}, 1152
s_add_u32 s{S_T0}, s{S_T0}, s{S_T1}
s_add_u32 s{S_T0}, s{S_T0}, 1024
"""
        A0 = 90
        for c in range(16):
            t += f"s_waitcnt vmcnt({15 - c})\n"
            for d in range(4):
                s = R0 + 4 * c + d
                if c == 0:
                    t += f"v_lshlrev_b32 v{A0 + 2 * d}, 16, v{s}\nv_and_b32 v{A0 + 1 + 2 * d}, 0xffff0000, v{s}\n"
                else:
                    t += f"v_lshlrev_b32 v2, 16, v{s}\nv_and_b32 v3, 0xffff0000, v{s}\n"
                    t += f"v_pk_add_f32 v[{A0 + 2 * d}:{A0 + 1 + 2 * d}], v[{A0 + 2 * d}:{A0 + 1 + 2 * d}], v[2:3]\n"
        for d in range(4):
            tt, p = d >> 1, d & 1
            t += f"v_cvt_pk_bf16_f32 v{4 + d}, v{A0 + 2 * d}, v{A0 + 1 + 2 * d}\n"
            t += f"s_add_u32 s{S_T1}, s{S_T0}, {2 * p * 2304}\n"
            t += f"buffer_store_short v{4 + d}, v9, {srd(SRD_OUT)}, s{S_T1} offen offset:{tt * 64}{o['out_mod']}\n"
            t += f"buffer_store_short_d16_hi v{4 + d}, v9, {srd(SRD_OUT)}, s{S_T1} offen offset:{tt * 64 + 2304}{o['out_mod']}\n"
        t += "L_ldone:\n"
        if o["stamps"]:
            self.lnames.append("done")
            t += self.stamp_out([240, 241], len(self.lnames) - 1)
        t += "s_endpgm\n"
        pst = f"s_memrealtime s[60:61]\ns_add_u32 m0, s{S_NEED}, 40\ns_waitcnt lgkmcnt(0)\nv_writelane_b32 v241, s60, m0\n" if o.get("fstamps") else ""
        t += f"""L_pollstep:
s_sleep {o["psleep"]}
s_cmp_ge_u32 s{S_NEED}, 3
s_cbranch_scc1 L_pret
s_xor_b32 s{S_T0}, s{S_CID}, 1
s_lshl_b32 s{S_T0}, s{S_T0}, 2
s_add_u32 s{S_T0}, s{S_T0}, s{S_W}
s_lshl_b32 s{S_T0}, s{S_T0}, 7
s_add_u32 s{S_PCNT}, s{S_PCNT}, 1
s_mov_b64 exec, 1
s_and_b32 s{S_T1}, s{S_PCNT}, {o["pslow"]}
s_cbranch_scc1 L_pfast
buffer_load_dword v{VPOLL}, v{VZ}, {srd(SRD_WS)}, s{S_T0} offen sc1
s_branch L_pwait
L_pfast:
s_add_u32 s{S_T0}, s{S_T0}, {WS_FLAGS2}
buffer_load_dword v{VPOLL2}, v{VZ}, {srd(SRD_WS)}, s{S_T0} offen sc1
L_pwait:
s_mov_b64 exec, -1
s_waitcnt vmcnt(0)
v_readfirstlane_b32 s{S_T0}, v{VPOLL}
v_readfirstlane_b32 s{S_T2}, v{VPOLL2}
L_pagain:
s_add_u32 s{S_T1}, s{S_TAG}, s{S_NEED}
s_sub_u32 s{S_T3}, s{S_T0}, s{S_T1}
s_sub_u32 s{S_T1}, s{S_T2}, s{S_T1}
s_min_u32 s{S_T1}, s{S_T1}, s{S_T3}
s_sub_u32 s{S_T3}, 7, s{S_NEED}
s_cmp_gt_u32 s{S_T1}, s{S_T3}
s_cbranch_scc1 L_pret
{pst}s_add_u32 s{S_NEED}, s{S_NEED}, 1
s_cmp_lt_u32 s{S_NEED}, 3
s_cbranch_scc1 L_pagain
L_pret:
s_setpc_b64 s[{S_LINK}:{S_LINK + 1}]
L_waittag:
s_lshl_b32 s{S_T0}, s{S_COMP}, 2
L_wrtag:
buffer_load_dword v4, v{VZ}, {srd(SRD_DBG)}, s{S_T0} offen sc1
s_waitcnt vmcnt(0)
v_readfirstlane_b32 s{S_TAG}, v4
s_nop 1
s_cmp_lg_u32 s{S_TAG}, 0
s_cbranch_scc1 L_wrret
""" + self.spin_guard("L_wrret") + f"""s_branch L_wrtag
L_wrret:
s_setpc_b64 s[{S_LINK}:{S_LINK + 1}]
"""
        return t

    def generate(self):
        o = self.o
        self.build_mfma()
        self.alloc_slots()
        self.build_fillers()
        S = Stream()
        if o["stamps"]:
            self.stamp(S, "start")
        self.compute_stream(S)
        self.compute_tail(S)
        t = f"; @launch grid=(256,1,1) block=(512,1,1) lds={LDS_BYTES}\n"
        t += f""".amdgcn_target "amdgcn-amd-amdhsa--gfx950"
.text
.globl {KNAME}
.p2align 8
.type {KNAME},@function
{KNAME}:
"""
        t += self.prologue() + self.loader() + ".p2align 6\nL_compute:\n" + "s_nop 0\n" * o.get("cphase", 0) + self.compute_prologue() + S.text()
        if o["stamps"]:
            self.cnames.append("done")
            t += self.stamp_out([V_ST], len(self.cnames) - 1)
        t += "L_end:\ns_endpgm\n"
        for st in self.spins:
            t += f"""L_spin{st}:
ds_read_b32 v{V_FLAG}, v{V_FA} offset:{LDS_READY + 32 * st}
s_waitcnt lgkmcnt(0)
v_cmp_ne_u32 vcc, 1, v{V_FLAG}
s_nop 1
s_cbranch_vccz L_back{st}
""" + self.spin_guard(f"L_back{st}") + f"s_branch L_spin{st}\n"
        t += f"""L_lead:
s_waitcnt vmcnt({S.marks["lead"]})
v_bfe_u32 v{V_MX0}, v{V_MX0}, 3, 8
v_bfe_u32 v{V_MX1}, v{V_MX1}, 3, 8
v_bfe_u32 v{V_MC}, v{V_MC}, 3, 8
s_mov_b32 s{S_T1}, 0
L_scan:
v_cmp_eq_u32 vcc, s{S_T1}, v{V_MX0}
v_cmp_eq_u32 s[{S_T2}:{S_T3}], s{S_T1}, v{V_MX1}
v_cmp_eq_u32 s[84:85], s{S_T1}, v{V_MC}
s_nop 1
s_or_b64 vcc, vcc, s[{S_T2}:{S_T3}]
s_or_b64 vcc, vcc, s[84:85]
s_cbranch_vccz L_scandone
s_add_u32 s{S_T1}, s{S_T1}, 1
s_branch L_scan
L_scandone:
s_lshl_b32 s{S_T1}, s{S_T1}, 3
s_or_b32 s{S_T1}, s{S_T1}, 0x800
v_mov_b32 v{V_TMP1}, s{S_T1}
s_mov_b64 exec, 1
buffer_store_dword v{V_TMP1}, v{V_ZERO}, {srd(SRD_DBG)}, s{S_T4} offen sc1
s_mov_b64 exec, -1
s_branch L_leadret
L_tagspin:
buffer_load_dword v{V_TAG}, v{V_ZERO}, {srd(SRD_DBG)}, s{S_T4} offen sc1
s_waitcnt vmcnt(0)
v_cmp_eq_u32 vcc, 0, v{V_TAG}
s_nop 1
s_cbranch_vccz L_tagok
""" + self.spin_guard("L_tagok") + f"""s_branch L_tagspin
L_fslow:
buffer_load_dword v{V_TMP1}, v{V_TMP0}, {srd(SRD_WS)}, 0 offen sc1
s_add_u32 s{S_T1}, s{S_TAG}, 4
s_waitcnt vmcnt(0)
v_subrev_u32 v{V_TMP1}, s{S_T1}, v{V_TMP1}
v_cmp_lt_u32 vcc, 3, v{V_TMP1}
s_add_u32 s{S_SPIN}, s{S_SPIN}, 1
s_cmp_gt_u32 s{S_SPIN}, {o['spin_limit']}
s_cbranch_scc1 L_fforce
s_cbranch_vccnz L_fsret
L_fforce:
s_bitset1_b32 s{S_GOT}, 31
L_fsret:
s_setpc_b64 s[{S_LINK}:{S_LINK + 1}]
L_ownspin:
buffer_load_dword v{V_TMP1}, v{V_TMP0}, {srd(SRD_WS)}, 0 offen offset:4 sc1
s_waitcnt vmcnt(0)
v_subrev_u32 v{V_TMP1}, s{S_T1}, v{V_TMP1}
v_cmp_lt_u32 vcc, 6, v{V_TMP1}
s_nop 1
s_cbranch_vccz L_ownok
""" + self.spin_guard("L_ownok") + "s_branch L_ownspin\n"
        t += f""".p2align 6
L_ones:
.fill 128, 4, 1
L_codeend:
.section .rodata,"a"
.p2align 6
.amdhsa_kernel {KNAME}
  .amdhsa_next_free_vgpr 256
  .amdhsa_next_free_sgpr 102
  .amdhsa_accum_offset 256
  .amdhsa_group_segment_fixed_size 0
  .amdhsa_kernarg_size 104
  .amdhsa_user_sgpr_count 2
  .amdhsa_user_sgpr_kernarg_segment_ptr 1
  .amdhsa_system_sgpr_workgroup_id_x 1
  .amdhsa_float_denorm_mode_32 3
.end_amdhsa_kernel
"""
        self.stats = dict(nops=S.nops, waits=S.nwaits, instr=S.ninstr, mfma=len(self.ms), stages=len(self.stages))
        return t


if __name__ == "__main__":
    import json
    opt = json.loads(sys.argv[2]) if len(sys.argv) > 2 else {}
    g = Gen(**opt)
    txt = g.generate()
    open(sys.argv[1], "w").write(txt)
    json.dump([g.cnames, g.lnames], open(sys.argv[1] + ".names", "w"))
    print(g.stats, file=sys.stderr)
```

```python
import sys
from emit import *

KNAME = "concat_heads__mha_block_cached__gqa_block_cached__near_ridge_kernel"

DEFAULT = dict(
    stamps=False, la=4, budget=5, thr=10, order=None, common=1,
    kv_mod=" nt", x_mod="", wq_mod="", wo_mod="", o_mod="", two_mod="", ost_mod=" sc1", pst_mod=" sc1", pld_mod=" sc1",
    pre_mod=" sc1 nt", out_mod="",
    pairwait=True, late=True, late_lead=30, pk=True, lsleep=1, psleep=2, pslow=15, cprio=3,
    e0_split=60, pace=[(0, 0), (3, 2), (12, 3)], e1_at=31, e2_at=52, e3_at=64, own_at=72, lead_at=90, tag_at=200, n1_start=3, n1_step=2,
    pseq='L80 P01a P01b L81 P10a P10b P20a P20b P30a P30b P11a P11b', merge=True, clear=False, clr_mod=' sc1', rush=None, ostride=65536, varsel="bfe_u32 s100, s2, 0x20005", spin_limit=1 << 18,
)

WS_FLAGS2 = 0x40000
WS_O = 0x100000
WS_PART = 0x1400000
WS_L8 = 0x1c00000
WS_STAMP = 0x8000000
LDS_READY = 0x000
LDS_DONE = 0x7f0
SLOT0 = 4096
SLOT = 16384
NSLOT = 9
LDS_BYTES = SLOT0 + NSLOT * SLOT

S_WAVE, S_P, S_O, S_B, S_J, S_COMP, S_CID, S_W = 3, 4, 5, 6, 7, 8, 9, 10
SRD_X, SRD_K, SRD_V, SRD_WQ, SRD_WO, SRD_WS, SRD_OUT, SRD_DBG = 12, 16, 20, 24, 28, 32, 36, 40
S_T0, S_T1, S_T2, S_T3 = 44, 45, 46, 47
S_TAG, S_SPIN, S_SCALE, S_T4 = 56, 57, 58, 59
S_STAMP = 60
S_LINK = 92
S_NEED, S_RDY = 94, 95
S_TAB = 96
S_L1024, S_SOFF, S_VAR, S_PCNT = 98, 99, 100, 101
S_XB, S_WQB, S_KVB, S_WOB, S_BLK, S_OWNB, S_GB, S_ROT, S_HD = 48, 49, 50, 51, 52, 53, 54, 55, 11
S_OST, S_FLAGA, S_PARTB, S_L8B, S_OUTB, S_INBOX, S_LEAD, S_GOT, S_DEC = 48, 49, 50, 51, 52, 53, 54, 55, 11


def srd(r):
    return f"s[{r}:{r + 3}]"


class Group:
    def __init__(self, name, kind, **kw):
        self.name, self.kind, self.kw = name, kind, kw
        self.need = self.last = self.slot = None
        self.free_req = 0

    @property
    def addr(self):
        return SLOT0 + self.slot * SLOT


def build_groups():
    G = {}

    def add(name, kind, **kw):
        G[name] = Group(name, kind, **kw)
    for i in range(9):
        add(f"X{i}", "x", i=i)
        add(f"W{i}a", "wq", i=i, sub=0)
        add(f"W{i}b", "wq", i=i, sub=1)
    for h in range(2):
        for s, sub in enumerate("ab"):
            add(f"K{h}{sub}", "k", h=h, sub=s)
            add(f"V{h}{sub}", "v", h=h, sub=s)
            for r in range(4):
                add(f"U{r}{h}{sub}", "fin" if h == 1 and r >= 2 else "wo", r=r, h=h, sub=s)
                if r:
                    add(f"O{r}{h}{sub}", "o", r=r, h=h, sub=s)
        add(f"E{h}", "l8", h=h)
    add("Za", "z", sub=0)
    add("Zb", "z", sub=1)
    return G


def make_order(ins=None, post=("K1", "V0", "U", "V1"), nvar=4, step=1, zpos=4, pon=2, rem=None, fix={}):
    ins = {14: ["@two"], 20: ["K0a", "K0b"]} if ins is None else ins
    o = []
    gi = 0
    for i in range(9):
        for n in (f"X{i}", f"W{i}a", f"W{i}b"):
            o.append(n)
            o += fix.get(gi, [])
            for p, items in ins.items():
                for v in range(nvar):
                    if min(p + v * step, 26) == gi:
                        o += [it + (f"/{v}" if nvar > 1 else "") for it in items]
            gi += 1
    for p in post:
        o += ["@tag", "U00a", "U00b"] if p == "U" else [p] if p[0] == "@" else [p + "a", p + "b"]
    rest = [] if rem else ["E0", "U01a", "U01b", "E1"]
    rest += rem or ("U10a O10a U10b O10b U20a O20a U20b O20b U30a O30a U30b O30b U11a O11a O21a U11b O11b O21b "
                    "U21a O31a U31a O31b U21b U31b").split()
    for i, n in enumerate(rest):
        o += fix.get(n, [])
        if i == zpos:
            o += ["R:Za", "R:Zb"]
        if i == zpos + 3:
            o.append("@zflag")
        o.append(n)
    return o + ["D:Za", "D:Zb"]


def T(i):
    return 16 * i


ARING, NA = 192, 6
BRING, NB = 216, 3
V_TR, V_TR8, V_XB0, V_XB1, V_KB0, V_KB1, V_LIN = 228, 229, 230, 231, 232, 233, 234
V_ZERO, V_FA, V_LO, V_FLAG = 235, 236, 237, 238
V_POOL, NPOOL = 239, 5
V_MX0, V_MX1, V_MC, V_SUM1, V_ST, V_SUM0, V_TMP0, V_TMP1, V_TAG, V_FV, V_OUTA = 244, 245, 246, 248, 249, 250, 251, 252, 253, 254, 255


class Load:
    def __init__(self, group, pat, offs, ring, reg=None):
        self.group, self.pat, self.offs, self.ring, self.reg = group, pat, offs, ring, reg


class M:
    def __init__(self, d, a, b, c0, stage, extra=()):
        self.d, self.a, self.b, self.c0, self.stage, self.extra = d, a, b, c0, stage, list(extra)


def tr_load(g, ks, t, extra=0):
    base = extra + ks * 4096 + t * 256
    return Load(g, V_TR, [base, base + 1024], "A")


def tr8_load(g, s, t):
    base = s * 2048 + t * 256
    return Load(g, V_TR8, [base, base + 512], "A")


class Gen:
    def __init__(self, **opt):
        self.o = dict(DEFAULT)
        self.o.update(opt)
        self.G = build_groups()
        self.stages, self.ms, self.mark = [], [], {}
        self.cnames, self.lnames = [], []
        self.tm = 's_memrealtime'

    def stage(self, name):
        self.stages.append(dict(name=name, new=[]))
        self.mark["st_" + name] = len(self.ms)
        return len(self.stages) - 1

    def use(self, g, st):
        if g.need is None:
            g.need = st
            self.stages[st]["new"].append(g)
            assert len(self.stages[st]["new"]) <= 2 or g.kind == "z"
        g.last = st

    def add(self, d, a, b, c0, st, extra=()):
        for x in [a, b] + list(extra):
            if isinstance(x, Load):
                self.use(x.group, st)
        self.ms.append(M(d, a, b, c0, st, extra))
        return len(self.ms) - 1

    def build_mfma(self):
        G, mk = self.G, self.mark
        for i in range(9):
            X = G[f"X{i}"]
            for sub in range(2):
                W = G[f"W{i}{'ab'[sub]}"]
                st = self.stage(f"Q{i}{'ab'[sub]}")
                xf = [Load(X, V_XB0 + ksl, [sub * 512], "B") for ksl in range(2)]
                seq = [(ksl, hh) for ksl in range(2) for hh in range(2)]
                if i == 8 and sub == 1:
                    seq = [(ksl, hh) for hh in range(2) for ksl in range(2)]
                for ksl, hh in seq:
                    for t in range(4):
                        c0 = (i == 0 and sub == 0 and ksl == 0)
                        mk[f"Qend{hh}{t}"] = self.add(T(4 * hh + t), tr_load(W, ksl, t, hh * 8192), xf[ksl], c0, st)
        for hh in range(2):
            for sub in range(2):
                K = G[f"K{hh}{'ab'[sub]}"]
                st = self.stage(f"S{hh}{'ab'[sub]}")
                for ktl in range(2):
                    kt = 2 * sub + ktl
                    for s in range(8):
                        a = Load(K, V_KB0 + (s & 1), [ktl * 8192 + (s >> 1) * 256], "A")
                        idx = self.add(T(4 * hh + kt), a, T(8 + 2 * hh) + 4 * s, s == 0, st)
                        mk.setdefault(f"S{hh}use{s}", idx)
                        mk[f"Send{hh}{kt}"] = idx
        ob = [T(8), T(4)]

        def pv(hh):
            for sub in range(2):
                V = G[f"V{hh}{'ab'[sub]}"]
                st = self.stage(f"PV{hh}{'ab'[sub]}")
                for sl in range(4):
                    s = 4 * sub + sl
                    for dt in range(4):
                        mk[f"PVend{hh}{dt}"] = self.add(T(4 * hh + dt), tr_load(V, sl, dt), T(8 + 2 * hh) + 4 * s, s == 0, st)

        def proj(r, hh, sub):
            if True:
                U = G[f"U{r}{hh}{'ab'[sub]}"]
                st = self.stage(f"P{r}{hh}{'ab'[sub]}")
                for sl in range(4):
                    s = 4 * sub + sl
                    a = ob[hh] + 4 * s if r == 0 else Load(G[f"O{r}{hh}{'ab'[sub]}"], V_LO, [sl * 1024], "B")
                    for t in range(4):
                        idx = self.add(T(t), a, tr_load(U, sl, t), r == 0 and hh == 0 and s == 0, st)
                        if r == 0:
                            mk.setdefault(f"own{hh}use{s}", idx)

        def l8(hh):
            st = self.stage(f"L8{hh}")
            for s in range(8):
                for t in range(2):
                    mk[f"L8end{hh}{t}"] = self.add(T(10 + t), ob[hh] + 4 * s, tr8_load(G[f"E{hh}"], s, t), hh == 0 and s == 0, st)

        pv(0); proj(0, 0, 0); proj(0, 0, 1); pv(1)
        for w in self.o["pseq"].split():
            if w[0] == "L":
                l8(int(w[2]))
            else:
                proj(int(w[1]), int(w[2]), "ab".index(w[3]))
        FR = T(6)
        for lam in range(2):
            for e in range(2):
                for r in (2, 3):
                    if e == 0:
                        sts = self.fin_st = getattr(self, "fin_st", {})
                    for half in range(2):
                        if lam == 0 and e == 0:
                            st = self.stage(f"F{r}{'ab'[half]}")
                        elif (r, half) == (2, 0):
                            st = self.stage(f"G{2 * lam + e}")
                        for sl in range(4):
                            s = 4 * half + sl
                            a = FR + 32 * (r - 2) + 4 * s
                            if lam == 0 and e == 0:
                                a = Load(G[f"O{r}1{'ab'[half]}"], V_LO, [sl * 1024], "R", a)
                            mk[f"fin{2 * lam + e}"] = self.add(T(2 * lam + e), a, tr8_load(G[f"U{r}1{'ab'[lam]}"], s, e), False, st)
        st = self.stage("tail")
        if self.o["clear"]:
            del G["Za"], G["Zb"]
        else:
            self.use(G["Za"], st)
            self.use(G["Zb"], st)

    def alloc_slots(self):
        order = self.o["order"] or make_order()
        if self.o["clear"]:
            order = [n for n in order if n[-2:] not in ("Za", "Zb") and n != "@zflag"]
        self.items = order
        names = []
        for n in order:
            n = n.split("/")[0]
            if n.startswith("R:") or n.startswith("@"):
                continue
            n = n[2:] if n.startswith("D:") else n
            if n not in names:
                names.append(n)
        assert sorted(names) == sorted(self.G.keys()), set(self.G) ^ set(names)
        free = [0] * NSLOT
        for n in names:
            g = self.G[n]
            k = min(range(NSLOT), key=lambda i: free[i])
            g.slot, g.free_req = k, free[k]
            assert g.free_req <= g.need, (g.name, g.free_req, g.need)
            free[k] = g.last + 1
        self.max_free = max(g.free_req for g in self.G.values())

    def build_fillers(self):
        mk, o = self.mark, self.o
        F = []
        A = self.A = {}

        def put(x, after=None, before=None, alt=None):
            F.append((x if isinstance(x, list) else [x], after, before, alt if o["pk"] else None))

        def cvt(d, a, b):
            return valu(f"v_cvt_pk_bf16_f32 v{d}, v{a}, v{b}", rd=[a, b], wr=[d])

        def store4(d, sreg, mod, tag=None):
            return I(f"buffer_store_dwordx4 {vr(d, 4)}, v{V_LIN}, {srd(SRD_WS)}, s{sreg} offen{mod}", "vst", rd=rng(d, 4) + [V_LIN], tag=tag)

        put([salu(f"s_cmp_lg_u32 s{S_LEAD}, 0"), I("s_cbranch_scc0 L_lead", "br"), label("L_leadret"), I("", "markvm", tag="lead")],
            after=o["lead_at"], before=o["lead_at"] + 20)
        put(I(f"buffer_load_dword v{V_TAG}, v{V_ZERO}, {srd(SRD_DBG)}, s{S_T4} offen sc1", "vld", rd=[V_ZERO], wr=[V_TAG]), after=o["tag_at"], before=o["tag_at"] + 16)
        put([valu(f"v_cmp_eq_u32 vcc, 0, v{V_TAG}", rd=[V_TAG]), salu("s_nop 0"), I("s_cbranch_vccnz L_tagspin", "br"), label("L_tagok"),
             valu(f"v_readfirstlane_b32 s{S_TAG}, v{V_TAG}", rd=[V_TAG], sw=[S_TAG])], after=264, before=274)
        for hh in range(2):
            for t in range(4):
                for p in range(8):
                    s = 2 * t + (p >> 2)
                    put(cvt(T(8 + 2 * hh) + 8 * t + p, T(4 * hh + t) + 2 * p, T(4 * hh + t) + 2 * p + 1),
                        after=mk[f"Qend{hh}{t}"], before=min(mk[f"S{hh}use{s}"], mk[f"S{hh}use0"] + 8 * t))

        def maxes(hh):
            for kt in range(4):
                b = T(4 * hh + kt)
                mx = V_MX0 + (kt & 1)
                for p in range(8):
                    if kt < 2 and p == 0:
                        put(valu(f"v_max_f32 v{mx}, v{b}, v{b + 1}", rd=[b, b + 1], wr=[mx]), after=mk[f"Send{hh}{kt}"])
                    else:
                        put(valu(f"v_max3_f32 v{mx}, v{mx}, v{b + 2 * p}, v{b + 2 * p + 1}", rd=[mx, b + 2 * p, b + 2 * p + 1], wr=[mx]),
                            after=mk[f"Send{hh}{kt}"])
            put(valu(f"v_max_f32 v{V_MX0}, v{V_MX0}, v{V_MX1}", rd=[V_MX0, V_MX1], wr=[V_MX0]))
            put(valu(f"v_mov_b32 v{V_MX1}, v{V_MX0}", rd=[V_MX0], wr=[V_MX1]))
            put(I(f"v_permlane32_swap_b32 v{V_MX0}, v{V_MX1}", "perm", rd=[V_MX0, V_MX1], wr=[V_MX0, V_MX1]))
            put(valu(f"v_max_f32 v{V_MX0}, v{V_MX0}, v{V_MX1}", rd=[V_MX0, V_MX1], wr=[V_MX0]))
            put(valu(f"v_mul_f32 v{V_MC}, s{S_SCALE}, v{V_MX0}", rd=[V_MX0], wr=[V_MC]))

        def exps(hh, before):
            vs = [V_SUM0, V_SUM1][hh]
            A0, A1 = V_MX0, V_MX1
            pend = []
            for pr in range(32):
                a = T(4 * hh) + 2 * pr
                b = a + 1
                put([valu(f"v_fma_f32 v{a}, v{a}, s{S_SCALE}, -v{V_MC}", rd=[a, V_MC], wr=[a]),
                     valu(f"v_fma_f32 v{b}, v{b}, s{S_SCALE}, -v{V_MC}", rd=[b, V_MC], wr=[b])], before=before,
                    alt=[valu(f"v_pk_fma_f32 {vr(a, 2)}, {vr(a, 2)}, s[{S_SCALE}:{S_SCALE + 1}], {vr(V_MC, 2)} op_sel_hi:[1,0,0] neg_lo:[0,0,1] neg_hi:[0,0,1]",
                              rd=[a, b, V_MC], wr=[a, b])])
                put(trans(f"v_exp_f32 v{a}, v{a}", rd=[a], wr=[a]), before=before)
                put(trans(f"v_exp_f32 v{b}, v{b}", rd=[b], wr=[b]), before=before)
                for x, al in pend:
                    put(x, before=before, alt=al)
                if pr == 0:
                    pend = [([valu(f"v_mov_b32 v{A0}, v{a}", rd=[a], wr=[A0]), valu(f"v_mov_b32 v{A1}, v{b}", rd=[b], wr=[A1])], None)]
                else:
                    pend = [([valu(f"v_add_f32 v{A0}, v{A0}, v{a}", rd=[A0, a], wr=[A0]),
                              valu(f"v_add_f32 v{A1}, v{A1}, v{b}", rd=[A1, b], wr=[A1])],
                             [valu(f"v_pk_add_f32 {vr(A0, 2)}, {vr(A0, 2)}, {vr(a, 2)}", rd=[A0, A1, a, b], wr=[A0, A1])])]
                pend.append((cvt(T(8 + 2 * hh) + pr, a, b), None))
            for x, al in pend:
                put(x, before=before, alt=al)
            put(valu(f"v_add_f32 v{vs}, v{A0}, v{A1}", rd=[A0, A1], wr=[vs]))
            put(valu(f"v_mov_b32 v{V_TMP0}, v{vs}", rd=[vs], wr=[V_TMP0]))
            put(I(f"v_permlane32_swap_b32 v{vs}, v{V_TMP0}", "perm", rd=[vs, V_TMP0], wr=[vs, V_TMP0]))
            put(valu(f"v_add_f32 v{vs}, v{vs}, v{V_TMP0}", rd=[vs, V_TMP0], wr=[vs]))
            put(trans(f"v_rcp_f32 v{vs}, v{vs}", rd=[vs], wr=[vs]))

        def norm(hh):
            ri = [V_SUM0, V_SUM1][hh]
            dst = [T(8), T(4)][hh]
            for s in range(8):
                dt = s >> 1
                before = mk["own0use0"] if hh == 0 else min(mk[f"own1use{s}"], mk["st_L80"] + o["n1_start"] + o["n1_step"] * s)
                for p in range(4):
                    a = T(4 * hh) + 8 * s + 2 * p
                    put([valu(f"v_mul_f32 v{a}, v{a}, v{ri}", rd=[a, ri], wr=[a]),
                         valu(f"v_mul_f32 v{a + 1}, v{a + 1}, v{ri}", rd=[a + 1, ri], wr=[a + 1])], after=mk[f"PVend{hh}{dt}"], before=before,
                        alt=[valu(f"v_pk_mul_f32 {vr(a, 2)}, {vr(a, 2)}, {vr(ri, 2)} op_sel_hi:[1,0]", rd=[a, a + 1, ri], wr=[a, a + 1])])
                for p in range(4):
                    a = T(4 * hh) + 8 * s + 2 * p
                    put(cvt(dst + 4 * s + p, a, a + 1), after=mk[f"PVend{hh}3"], before=before)
                st = [salu(f"s_add_u32 s{S_T3}, s{S_OST}, {hh * 32768 + (s >> 2) * 16384}")] if s % 4 == 0 else []
                st.append(I(f"buffer_store_dwordx4 {vr(dst + 4 * s, 4)}, v{V_LO}, {srd(SRD_WS)}, s{S_T3} offen offset:{(s & 3) * 1024}{o['ost_mod']}",
                            "vst", rd=rng(dst + 4 * s, 4) + [V_LO], tag=f"O{hh}"))
                m = [mk["st_P00a"], mk["st_L80"]][hh] + o["pace"][hh][0] + o["pace"][hh][1] * s
                assert m >= before
                if hh in o.get("nost", []):
                    st = st[:-1]
                A.setdefault(m, []).extend(st)

        def flag(e, tag, at):
            A.setdefault(at, []).extend([I("", "stamp", tag=f"pre{e}"), I("", "waitvm", tag=tag), I("", "stamp", tag=f"fl{e}"),
                 salu(f"s_add_u32 s{S_T1}, s{S_TAG}, {e}"), valu(f"v_mov_b32 v{V_FV}, s{S_T1}", wr=[V_FV]), salu("s_mov_b64 exec, 1")] +
                ([salu(f"s_add_u32 s{S_T1}, s{S_FLAGA}, {WS_FLAGS2}"),
                  I(f"buffer_store_dword v{V_FV}, v{V_ZERO}, {srd(SRD_WS)}, s{S_T1} offen", "vst", rd=[V_FV, V_ZERO])] if e < 3 else []) +
                [I(f"buffer_store_dword v{V_FV}, v{V_ZERO}, {srd(SRD_WS)}, s{S_FLAGA} offen sc1", "vst", rd=[V_FV, V_ZERO]),
                 salu("s_mov_b64 exec, -1")])

        maxes(0)
        exps(0, mk["st_PV0a"])
        n0 = len(F)
        maxes(1)
        exps(1, mk["st_PV1a"])
        tail = F[n0 + o["e0_split"]:]
        del F[n0 + o["e0_split"]:]
        norm(0)
        F.extend(tail)
        norm(1)
        flag(1, "O0", mk["st_P00a"] + o["e1_at"])
        flag(2, "O1", mk["st_L80"] + o["e2_at"])
        for qd in range(4):
            d = T(6) + 4 * qd
            for t in range(2):
                for p in range(2):
                    a = T(10 + t) + 4 * qd + 2 * p
                    put(cvt(d + 2 * t + p, a, a + 1), after=mk[f"L8end1{t}"], before=mk["L8end11"] + 13)
            A.setdefault(mk["L8end11"] + 1 + o["pace"][2][0] + o["pace"][2][1] * qd, []).extend(
                [salu(f"s_add_u32 s{S_T0}, s{S_L8B}, {qd << 16}"), store4(d, S_T0, " sc1", "L8")])
        p0 = mk["st_F2a"] - 128
        flag(3, "L8", mk["L8end11"] + 1 + o["e3_at"])
        put(valu(f"v_mbcnt_lo_u32_b32 v{V_TMP0}, -1, 0", wr=[V_TMP0]), after=p0 + o["own_at"])
        put(valu(f"v_and_b32 v{V_TMP0}, 3, v{V_TMP0}", rd=[V_TMP0], wr=[V_TMP0]))
        put(valu(f"v_lshlrev_b32 v{V_TMP0}, 11, v{V_TMP0}", rd=[V_TMP0], wr=[V_TMP0]))
        put(valu(f"v_xor_b32 v{V_TMP0}, s{S_FLAGA}, v{V_TMP0}", rd=[V_TMP0], wr=[V_TMP0]))
        put(I(f"buffer_load_dword v{V_TMP1}, v{V_TMP0}, {srd(SRD_WS)}, 0 offen offset:{0 if o['clear'] else 4} sc1", "vld", rd=[V_TMP0], wr=[V_TMP1]))
        put([salu(f"s_add_u32 s{S_T1}, s{S_TAG}, 1"), valu(f"v_subrev_u32 v{V_TMP1}, s{S_T1}, v{V_TMP1}", rd=[V_TMP1], wr=[V_TMP1]),
             valu(f"v_cmp_lt_u32 vcc, 6, v{V_TMP1}", rd=[V_TMP1]), salu("s_nop 0"), I("s_cbranch_vccnz L_ownspin", "br"), label("L_ownok"),
             salu(f"s_lshl_b32 s{S_DEC}, s{S_TAG}, 16"), salu(f"s_sub_u32 s{S_DEC}, 0, s{S_DEC}")],
            after=p0 + o["own_at"] + 40)
        for t in range(3):
            d = T(10) + 8 * t
            for p in range(8):
                put(cvt(d + p, T(t) + 2 * p, T(t) + 2 * p + 1), after=mk[f"fin{t}"])
                if not o["clear"]:
                    put(valu(f"v_pk_add_u16 v{d + p}, s{S_TAG}, v{d + p}", rd=[d + p], wr=[d + p]))
                if p == 0:
                    put([salu(f"s_xor_b32 s{S_T2}, s{S_O}, {t ^ 3}"), salu(f"s_lshl_b32 s{S_T2}, s{S_T2}, 17"),
                         salu(f"s_add_u32 s{S_T2}, s{S_T2}, s{S_PARTB}")])
                if p % 4 == 3:
                    put([salu(f"s_add_u32 s{S_T0}, s{S_T2}, {t * 8192 + (p >> 2) * 4096}"), store4(d + p - 3, S_T0, o["pst_mod"])],
                        before=(mk[f"fin{t}"] + o["rush"][p >> 2] if t == 2 and o["rush"] else None))
        self.F = F

    def compute_stream(self, S):
        o, ms = self.o, self.ms
        la, n = o["la"], len(self.ms)
        loads_at = {}
        seen = set()
        for m, x in enumerate(ms):
            for ld in [x.b, x.a] + x.extra:
                if isinstance(ld, Load) and id(ld) not in seen:
                    seen.add(id(ld))
                    loads_at.setdefault(max(m - la, -1), []).append((ld, x.stage))
        first_pos = {}
        for pos in sorted(loads_at):
            for ld, st in loads_at[pos]:
                first_pos.setdefault(st, pos)
        flag_at = {}
        for st, pos in first_pos.items():
            if self.stages[st]["new"]:
                flag_at.setdefault(max(pos - 3, -1), []).append(st)
        ai = bi = pi = 0
        bases, checked, have_flag = {}, set(), set()
        self.spins = []
        F, fi = self.F, 0
        stage_first = {}
        for m, x in enumerate(ms):
            stage_first.setdefault(x.stage, m)
        stamp_at = {}
        if o["stamps"]:
            for st, m0 in stage_first.items():
                if o.get("only") is None or self.stages[st]["name"] in o["only"]:
                    stamp_at[m0] = self.stages[st]["name"]

        def do_loads(pos):
            nonlocal ai, bi, pi
            c = 0
            for st in flag_at.get(pos, []):
                S.emit(I(f"ds_read_b32 v{V_FLAG}, v{V_FA} offset:{LDS_READY + 32 * st}", "ldsr", rd=[V_FA], wr=[V_FLAG]))
                have_flag.add(st)
                c += 1
            for ld, st in loads_at.get(pos, []):
                if st not in checked:
                    checked.add(st)
                    if self.stages[st]["new"] and not o.get("noready"):
                        assert st in have_flag
                        S.emit(valu(f"v_cmp_ne_u32 vcc, 1, v{V_FLAG}", rd=[V_FLAG]))
                        S.emit(salu("s_nop 0"))
                        S.emit(I(f"s_cbranch_vccnz L_spin{st}", "br"))
                        S.emit(label(f"L_back{st}"))
                        self.spins.append(st)
                        c += 3
                g = ld.group
                key = (g.name, ld.pat)
                if key not in bases:
                    for k2 in [k2 for k2 in bases if self.G[k2[0]].last < st]:
                        del bases[k2]
                    r = [V_POOL + (pi + q) % NPOOL for q in range(NPOOL) if V_POOL + (pi + q) % NPOOL not in bases.values()][0]
                    pi = r - V_POOL + 1
                    bases[key] = r
                    S.emit(valu(f"v_add_u32 v{r}, {g.addr}, v{ld.pat}", rd=[ld.pat], wr=[r]))
                    c += 1
                breg = bases[key]
                if ld.ring == "A":
                    ld.reg = ARING + 4 * (ai % NA)
                    ai += 1
                elif ld.ring == "B":
                    ld.reg = BRING + 4 * (bi % NB)
                    bi += 1
                ld.issued = True
                if len(ld.offs) == 2:
                    for q, off in enumerate(ld.offs):
                        S.emit(I(f"ds_read_b64_tr_b16 {vr(ld.reg + 2 * q, 2)}, v{breg} offset:{off}", "ldsr", rd=[breg], wr=rng(ld.reg + 2 * q, 2)))
                        c += 1
                else:
                    S.emit(I(f"ds_read_b128 {vr(ld.reg, 4)}, v{breg} offset:{ld.offs[0]}", "ldsr", rd=[breg], wr=rng(ld.reg, 4)))
                    c += 1
            return c

        def emit_item(k, exposed=False):
            c = 0
            for x in (F[k][3] if exposed and F[k][3] else F[k][0]):
                if x.kind == "stamp":
                    if o["stamps"] and o.get("fstamps"):
                        self.stamp(S, x.tag)
                    continue
                S.emit(x)
                c += x.cost
            return c

        def forced(m):
            last = -1
            for k in range(fi, len(F)):
                if F[k][2] is not None and F[k][2] <= m:
                    last = k
            return last

        deferred, defer_until, defer_stage = [], None, None
        do_loads(-1)
        for m, x in enumerate(ms):
            lastforce = forced(m)
            while fi <= lastforce:
                assert F[fi][1] is None or F[fi][1] < m, (F[fi][0][0].text, F[fi][1], m)
                if defer_until == m and lastforce - fi < o["late_lead"]:
                    for pos in deferred:
                        do_loads(pos)
                    deferred, defer_until = [], None
                emit_item(fi, True)
                fi += 1
            if defer_until == m:
                for pos in deferred:
                    do_loads(pos)
                deferred, defer_until = [], None
            if o.get("mrange") and o["mrange"][0] <= m < o["mrange"][1] and (m - o["mrange"][0]) % o["mrange"][2] == 0:
                self.stamp(S, f"m{m}")
            if m in stamp_at:
                self.stamp(S, stamp_at[m])
            a = x.a.reg if isinstance(x.a, Load) else x.a
            b = x.b.reg if isinstance(x.b, Load) else x.b
            if x.extra:
                pass
            if o["pairwait"] and m % 2 == 0 and m + 1 < n:
                extra = rng(a, 4) + rng(b, 4)
                for ld in (ms[m + 1].a, ms[m + 1].b):
                    if isinstance(ld, Load) and getattr(ld, "issued", False):
                        extra += rng(ld.reg, 4)
                S.wait(lg=S._need(S.lg, set(extra)))
            S.emit(mfma(x.d, a, b, x.c0))
            c = 1
            if (m + 1 == n or ms[m + 1].stage != x.stage) and x.stage < self.max_free:
                S.emit(I(f"global_load_lds_dword v{V_ZERO}, s[{S_TAB}:{S_TAB + 1}] offset:{4 * (63 - x.stage)}", "vld", rd=[V_ZERO]))
                c += 1
            if o["late"] and defer_until is None:
                for st in flag_at.get(m, []):
                    m0 = stage_first[st]
                    if forced(m0) - fi + 1 > 3 * (m0 - m) + 24:
                        defer_until, defer_stage = m0, st
            if defer_until is not None:
                key = ("d", m)
                loads_at[key] = [e for e in loads_at.get(m, []) if e[1] >= defer_stage]
                loads_at[m] = [e for e in loads_at.get(m, []) if e[1] < defer_stage]
                if m in flag_at:
                    flag_at[key] = flag_at.pop(m)
                deferred.append(key)
            c += do_loads(m)
            for x in self.A.get(m, []):
                if x.kind == "stamp":
                    if o["stamps"] and o.get("fstamps"):
                        self.stamp(S, x.tag)
                    continue
                S.emit(x)
                c += x.cost
            bud = o.get("sbud", o["budget"]) if self.stages[ms[m].stage]["name"][0] == "S" else o["budget"]
            if o.get("oddb") and m % 2 == 0:
                bud += o["oddb"]
            while fi < len(F) and c < bud:
                after = F[fi][1]
                if after is not None and after + 2 > m:
                    break
                c += emit_item(fi)
                fi += 1
        if o["stamps"]:
            self.stamp(S, "end")
        while fi < len(F):
            emit_item(fi, True)
            fi += 1

    def stamp(self, S, name):
        if self.o.get("tiny"):
            return
        k = len(self.cnames)
        self.cnames.append(name)
        D = 5
        if k >= D:
            S.raw(f"v_writelane_b32 v{V_ST}, s{S_STAMP + 2 * ((k - D) % 6)}, {k - D}")
        S.raw(f"{self.tm} s[{S_STAMP + 2 * (k % 6)}:{S_STAMP + 2 * (k % 6) + 1}]")
        if name == "polled":
            S.raw("s_waitcnt lgkmcnt(0)")
            for q in range(max(0, k - D + 1), k + 1):
                S.raw(f"v_writelane_b32 v{V_ST}, s{S_STAMP + 2 * (q % 6)}, {q}")

    def lstamp(self, name):
        if self.o.get("tiny"):
            return ""
        k = len(self.lnames)
        self.lnames.append(name)
        return f"{self.tm} s[{S_STAMP}:{S_STAMP + 1}]\ns_waitcnt lgkmcnt(0)\nv_writelane_b32 v{240 + k // 64}, s{S_STAMP}, {k % 64}\n"

    def stamp_out(self, regs, idx):
        t = f"s_waitcnt vmcnt(0) lgkmcnt(0)\n{self.tm} s[{S_STAMP}:{S_STAMP + 1}]\ns_memtime s[{S_STAMP + 2}:{S_STAMP + 3}]\ns_getreg_b32 s{S_STAMP + 4}, hwreg(HW_REG_XCC_ID)\ns_waitcnt lgkmcnt(0)\ns_sub_u32 s78, s{S_STAMP + 2}, s78\n"
        r = regs[-1]
        t += f"v_writelane_b32 v{regs[idx // 64]}, s{S_STAMP}, {idx % 64}\nv_writelane_b32 v{r}, s78, 58\nv_writelane_b32 v{r}, s76, 59\nv_writelane_b32 v{r}, s72, 60\nv_writelane_b32 v{r}, s{S_STAMP}, 61\nv_writelane_b32 v{r}, s{S_STAMP + 4}, 62\n"
        t += f"s_lshl_b32 s{S_T0}, s2, 3\ns_add_u32 s{S_T0}, s{S_T0}, s{S_WAVE}\ns_lshl_b32 s{S_T0}, s{S_T0}, 9\ns_add_u32 s{S_T0}, s{S_T0}, {WS_STAMP}\n"
        t += "v_mbcnt_lo_u32_b32 v1, -1, 0\nv_mbcnt_hi_u32_b32 v1, -1, v1\nv_lshlrev_b32 v1, 2, v1\n"
        for k, r in enumerate(regs):
            t += f"buffer_store_dword v{r}, v1, {srd(SRD_WS)}, s{S_T0} offen offset:{256 * k + (256 if len(regs) == 1 else 0)}\n"
        return t

    def spin_guard(self, back):
        return (f"s_add_u32 s{S_SPIN}, s{S_SPIN}, 1\ns_cmp_gt_u32 s{S_SPIN}, {self.o['spin_limit']}\n"
                f"s_cbranch_scc1 {back}\n")

    SIZES = {SRD_X: 1179648, SRD_K: 8388608, SRD_V: 8388608, SRD_WQ: 4718592, SRD_WO: 4718592,
             SRD_WS: 268435456, SRD_OUT: 2359296, SRD_DBG: 256}
    LAND = {SRD_K: 60, SRD_V: 62, SRD_OUT: 68, SRD_DBG: 70}

    def srd_build(self, regs):
        t = ""
        for r in regs:
            if r in self.LAND:
                t += f"s_mov_b64 s[{r}:{r + 1}], s[{self.LAND[r]}:{self.LAND[r] + 1}]\n"
            t += f"s_mov_b32 s{r + 2}, {self.SIZES[r]}\ns_mov_b32 s{r + 3}, 0x20000\n"
        return t

    def ids(self):
        return f"""s_bfe_u32 s{S_P}, s2, 0x10002
s_lshl_b32 s{S_COMP}, s{S_P}, 3
s_add_u32 s{S_COMP}, s{S_COMP}, s{S_B}
s_lshl_b32 s{S_CID}, s{S_COMP}, 2
s_add_u32 s{S_CID}, s{S_CID}, s{S_O}
s_lshl_b32 s{S_CID}, s{S_CID}, 2
s_add_u32 s{S_CID}, s{S_CID}, s{S_J}
s_mov_b32 s{S_SPIN}, 0
"""

    def prologue(self):
        st = self.o["stamps"]
        t = "s_memrealtime s[72:73]\ns_memtime s[78:79]\n" if st else ""
        t += f"""s_cmp_ge_u32 s2, 256
s_cbranch_scc1 L_end
s_and_b32 s{S_T0}, s2, 4
s_mul_i32 s{S_T0}, s{S_T0}, 10
s_add_u32 s{S_T2}, s0, s{S_T0}
s_addc_u32 s{S_T3}, s1, 0
s_load_dwordx2 s[{SRD_X}:{SRD_X + 1}], s[{S_T2}:{S_T3}], 0
s_load_dwordx2 s[{SRD_WQ}:{SRD_WQ + 1}], s[{S_T2}:{S_T3}], 24
s_load_dwordx4 s[60:63], s[{S_T2}:{S_T3}], 8
s_load_dwordx2 s[{SRD_WO}:{SRD_WO + 1}], s[{S_T2}:{S_T3}], 32
s_load_dwordx4 s[68:71], s[0:1], 80
s_load_dwordx2 s[{SRD_WS}:{SRD_WS + 1}], s[0:1], 96
v_readfirstlane_b32 s{S_WAVE}, v0
v_and_b32 v0, 63, v0
s_lshr_b32 s{S_B}, s2, 5
s_lshr_b32 s{S_WAVE}, s{S_WAVE}, 6
s_and_b32 s{S_W}, s{S_WAVE}, 3
s_cmp_lt_u32 s{S_WAVE}, 4
s_cbranch_scc1 L_cstub
"""
        return t

    def cstub(self):
        st = self.o["stamps"]
        return f"""L_cstub:
s_getpc_b64 s[{S_TAB}:{S_TAB + 1}]
L_pc2:
{self.early1()}; clear the hand-off words in LDS
v_mov_b32 v16, 0
v_mov_b32 v17, 0
v_mov_b32 v18, 0
v_mov_b32 v19, 0
s_lshl_b32 s{S_T0}, s{S_W}, 10
v_lshl_add_u32 v{V_LIN}, v0, 4, s{S_T0}
ds_write_b128 v{V_LIN}, v[16:19]
s_cmp_lg_u32 s{S_WAVE}, 0
s_cbranch_scc1 L_notouch
s_bfe_u32 s{S_T0}, s2, 0x30003
s_mul_i32 s{S_T0}, s{S_T0}, (L_codeend-L_pc2+1023)/1024
v_add_u32 v1, s{S_T0}, v0
v_min_u32 v1, (L_codeend-L_pc2-4)/128, v1
v_lshlrev_b32 v1, 7, v1
global_load_dword v{V_FV}, v1, s[{S_TAB}:{S_TAB + 1}]
L_notouch:
s_add_u32 s{S_TAB}, s{S_TAB}, L_ones-L_pc2
s_addc_u32 s{S_TAB + 1}, s{S_TAB + 1}, 0
s_waitcnt lgkmcnt(0)
{"s_memrealtime s[76:77]" if st else ""}
s_barrier
s_branch L_compute
"""

    def compute_prologue(self):
        t = f"""s_setprio {self.o['cprio']}
s_and_b32 s{S_O}, s2, 3
s_bfe_u32 s{S_J}, s2, 0x20003
v_mov_b32 v{V_ZERO}, 0
v_and_b32 v1, 31, v0
v_lshrrev_b32 v2, 5, v0
v_bfe_u32 v3, v0, 2, 2
v_and_b32 v4, 1, v0
v_lshlrev_b32 v4, 1, v4
v_bfe_u32 v5, v0, 1, 1
v_or_b32 v4, v4, v5
v_bfe_u32 v5, v0, 4, 1
v_lshl_add_u32 v4, v5, 2, v4
v_lshlrev_b32 v4, 3, v4
v_lshl_add_u32 v4, v3, 6, v4
v_lshl_add_u32 v{V_TR}, v2, 11, v4
v_lshl_add_u32 v{V_TR8}, v2, 10, v4
v_lshrrev_b32 v6, 3, v1
v_lshlrev_b32 v6, 10, v6
v_and_b32 v7, 7, v1
v_lshl_add_u32 v6, v7, 6, v6
v_xor_b32 v7, v3, v2
v_lshl_add_u32 v6, v7, 4, v6
s_lshl_b32 s{S_T0}, s{S_W}, 12
v_add_u32 v{V_XB0}, s{S_T0}, v6
v_xor_b32 v{V_XB1}, 32, v{V_XB0}
v_lshl_add_u32 v{V_LO}, v0, 4, s{S_T0}
v_and_b32 v6, 7, v0
v_lshlrev_b32 v{V_FA}, 2, v6
s_mul_i32 s{S_T0}, s{S_W}, 516
s_add_u32 m0, s{S_T0}, {LDS_DONE}
v_and_b32 v5, 19, v1
v_bfe_u32 v6, v1, 2, 1
v_lshl_add_u32 v5, v6, 3, v5
v_bfe_u32 v6, v1, 3, 1
v_lshl_add_u32 v5, v6, 2, v5
; K pattern
v_lshrrev_b32 v6, 2, v5
v_lshlrev_b32 v7, 10, v6
v_and_b32 v8, 3, v5
v_lshl_add_u32 v7, v8, 6, v7
v_and_b32 v6, 3, v6
v_xor_b32 v6, v6, v2
v_lshl_add_u32 v{V_KB0}, v6, 4, v7
v_xor_b32 v{V_KB1}, 32, v{V_KB0}
v_mul_u32_u24 v6, {4 * 2304}, v2
v_lshl_add_u32 v{V_OUTA}, v5, 1, v6
s_mov_b32 s{S_SCALE}, 0x3e0293ee
"""
        t += self.ids() + self.srd_build([SRD_WS, SRD_OUT, SRD_DBG])
        t += f"""s_mul_i32 s{S_OST}, s{S_CID}, {self.o['ostride']}
s_add_u32 s{S_OST}, s{S_OST}, {WS_O}
s_lshl_b32 s{S_INBOX}, s{S_CID}, 15
s_add_u32 s{S_INBOX}, s{S_INBOX}, {WS_PART}
s_andn2_b32 s{S_PARTB}, s{S_CID}, 12
s_lshl_b32 s{S_PARTB}, s{S_PARTB}, 15
s_add_u32 s{S_PARTB}, s{S_PARTB}, {WS_PART}
s_lshl_b32 s{S_FLAGA}, s{S_CID}, 2
s_add_u32 s{S_FLAGA}, s{S_FLAGA}, s{S_W}
s_lshl_b32 s{S_FLAGA}, s{S_FLAGA}, 7
s_lshl_b32 s{S_L8B}, s{S_COMP}, 4
s_add_u32 s{S_L8B}, s{S_L8B}, s{S_W}
s_lshl_b32 s{S_L8B}, s{S_L8B}, 4
s_and_b32 s{S_T0}, s{S_CID}, 15
s_add_u32 s{S_L8B}, s{S_L8B}, s{S_T0}
s_sub_u32 s{S_L8B}, s{S_L8B}, s{S_W}
s_lshl_b32 s{S_L8B}, s{S_L8B}, 10
s_add_u32 s{S_L8B}, s{S_L8B}, {WS_L8}
s_lshl_b32 s{S_OUTB}, s{S_B}, 2
s_add_u32 s{S_OUTB}, s{S_OUTB}, s{S_W}
s_mul_i32 s{S_OUTB}, s{S_OUTB}, {32 * 2304}
s_mul_i32 s{S_T0}, s{S_P}, 1152
s_add_u32 s{S_OUTB}, s{S_OUTB}, s{S_T0}
s_lshl_b32 s{S_T0}, s{S_J}, 8
s_add_u32 s{S_OUTB}, s{S_OUTB}, s{S_T0}
s_lshl_b32 s{S_T0}, s{S_O}, 6
s_add_u32 s{S_OUTB}, s{S_OUTB}, s{S_T0}
s_lshl_b32 s{S_T4}, s{S_COMP}, 2
{self.clears()}{self.pretouch()}{self.warm()}; leader wave: fetch the hand-off words an earlier launch left (the tag is chosen from them a little later)
s_and_b32 s{S_LEAD}, s{S_CID}, 15
s_or_b32 s{S_LEAD}, s{S_LEAD}, s{S_WAVE}
s_cmp_lg_u32 s{S_LEAD}, 0
s_cbranch_scc1 L_noscan
v_lshlrev_b32 v1, 7, v0
s_lshl_b32 s{S_T0}, s{S_COMP}, 13
buffer_load_dwordx2 v[{V_MX0}:{V_MX1}], v1, {srd(SRD_WS)}, s{S_T0} offen sc1
s_add_u32 s{S_T0}, s{S_T0}, {WS_FLAGS2}
buffer_load_dword v{V_MC}, v1, {srd(SRD_WS)}, s{S_T0} offen sc1
L_noscan:
"""
        return t

    def pretouch(self):
        if not self.o.get("pre"):
            return ""
        d = V_TMP1
        return f"""s_cmp_lg_u32 s{S_WAVE}, 1
s_cbranch_scc1 L_pt1
v_and_b32 v1, 3, v0
v_lshlrev_b32 v2, 17, v1
v_add_u32 v2, s{S_PARTB}, v2
v_lshlrev_b32 v3, 16, v1
v_add_u32 v3, s{S_L8B}, v3
v_mov_b32 v4, s{S_OST}
v_cmp_gt_u32 vcc, 4, v0
s_nop 1
v_cndmask_b32 v4, v4, v2, vcc
v_lshrrev_b32 v5, 2, v0
v_cmp_eq_u32 vcc, 1, v5
s_nop 1
v_cndmask_b32 v4, v4, v3, vcc
s_mov_b64 exec, 0x1ff
buffer_load_dword v{d}, v4, {srd(SRD_WS)}, 0 offen sc1 nt
s_mov_b64 exec, 1
buffer_load_dword v{d}, v{V_ZERO}, {srd(SRD_OUT)}, s{S_OUTB} offen nt
buffer_load_dword v{d}, v{V_ZERO}, {srd(SRD_WS)}, s{S_FLAGA} offen sc1 nt
s_mov_b64 exec, -1
L_pt1:
"""

    def early1(self):
        if not self.o.get("early1", True):
            return ""
        return f"""; the first "ready" word is copied from the table of ones: fetch its lines now
v_lshlrev_b32 v1, 2, v0
v_add_u32 v1, L_ones-L_pc2, v1
global_load_dword v{V_TMP0}, v1, s[{S_TAB}:{S_TAB + 1}]
"""

    def clears(self):
        if not self.o["clear"]:
            return ""
        t = "; mark this wave's inbox as not written yet\n" + "".join(f"v_mov_b32 v{20 + k}, -1\n" for k in range(4))
        for k in range(6):
            t += f"s_add_u32 s{S_T0}, s{S_INBOX}, {k * 4096}\nbuffer_store_dwordx4 v[20:23], v{V_LIN}, {srd(SRD_WS)}, s{S_T0} offen{self.o['clr_mod']}\n"
        return t

    def warm(self):
        n = self.o.get("kick", 0)
        if not n:
            return ""
        return f"""s_cmp_ge_u32 s{S_WAVE}, {n}
s_cbranch_scc1 L_nokick
""" + self.srd_build([SRD_K]) + f"""s_lshl_b32 s{S_T0}, s{S_B}, 5
s_lshl_b32 s{S_T1}, s{S_O}, 3
s_add_u32 s{S_T0}, s{S_T0}, s{S_T1}
s_lshl_b32 s{S_T1}, s{S_J}, 1
s_add_u32 s{S_T0}, s{S_T0}, s{S_T1}
s_lshl_b32 s{S_T0}, s{S_T0}, 2
s_add_u32 s{S_T0}, s{S_T0}, s{S_W}
s_lshl_b32 s{S_T0}, s{S_T0}, 13
v_lshlrev_b32 v1, 7, v0
buffer_load_dword v{V_TMP1}, v1, {srd(SRD_K)}, s{S_T0} offen
L_nokick:
"""

    def compute_tail(self, S):
        o = self.o
        if o["stamps"]:
            self.stamp(S, "sent")
        NEW = T(0)
        OLD = rng(T(4), 24)
        X = ARING
        zst = len(self.stages) - 1
        S.emit(I("", "waitlg0"))
        S.emit(salu("s_nop 7"))
        phases = [(0, 8), (8, 14)]

        def loads(k0, k1):
            for k in range(k0, k1):
                S.raw(f"s_add_u32 s{S_T1}, s{S_INBOX}, {k * 4096}")
                S.raw(f"buffer_load_dwordx4 {vr(NEW + 4 * k, 4)}, v{V_LIN}, {srd(SRD_WS)}, s{S_T1} offen{o['pld_mod']}")

        def check(k0, k1, younger):
            for k in range(k0, k1):
                S.raw(f"s_waitcnt vmcnt({k1 - 1 - k + younger}) lgkmcnt(0)")
                if o["clear"]:
                    d = NEW + 4 * k
                    S.raw(f"v_max_u32 v{X + 4}, v{d}, v{d + 1}" if k == k0 else f"v_max3_u32 v{X + 4}, v{X + 4}, v{d}, v{d + 1}")
                    S.raw(f"v_max3_u32 v{X + 4}, v{X + 4}, v{d + 2}, v{d + 3}")
                    continue
                for q in range(4):
                    S.raw(f"v_xor_b32 v{X + q}, v{NEW + 4 * k + q}, v{OLD[4 * k + q]}")
                if k == k0:
                    S.raw(f"v_min_u32 v{X + 4}, v{X}, v{X + 1}")
                else:
                    S.raw(f"v_min3_u32 v{X + 4}, v{X + 4}, v{X}, v{X + 1}")
                S.raw(f"v_min3_u32 v{X + 4}, v{X + 4}, v{X + 2}, v{X + 3}")
            S.raw(f"v_cmp_eq_u32 vcc, {-1 if o['clear'] else 0}, v{X + 4}")

        def accumulate(k0, k1):
            for k in range(k0, k1):
                for q in range(4):
                    s = NEW + 4 * k + q
                    a = T(3) + 8 * (k & 1) + 2 * q
                    y = X + 6 + 2 * (q & 1)
                    S.raw(f"v_lshlrev_b32 v{y}, 16, v{s}" if o["clear"] else f"v_lshl_add_u32 v{y}, v{s}, 16, s{S_DEC}")
                    S.raw(f"v_and_b32 v{y + 1}, 0xffff0000, v{s}")
                    S.raw(f"v_pk_add_f32 {vr(a, 2)}, {vr(a, 2)}, {vr(y, 2)}")

        def retry(name, again):
            S.raw("s_nop 1")
            S.raw(f"s_cbranch_vccz {name}_ok")
            S.raw(f"s_bitcmp1_b32 s{S_GOT}, 31")
            S.raw(f"s_cbranch_scc1 {name}_ok")
            if o.get("fsleep"):
                S.raw(f"s_sleep {o['fsleep']}")
            S.raw(f"s_add_u32 s{S_GOT}, s{S_GOT}, 1")
            S.raw(f"s_cmp_lt_u32 s{S_GOT}, 48")
            S.raw(f"s_cbranch_scc1 {again}")
            S.raw(f"s_call_b64 s[{S_LINK}:{S_LINK + 1}], L_fslow")
            S.raw(f"s_branch {again}")

        loads(0, 6)
        S.raw(f"s_mov_b32 s{S_GOT}, 0")
        if not o["clear"]:
            S.out.append("L_zspin:")
            S.raw(f"ds_read_b32 v{V_FLAG}, v{V_FA} offset:{LDS_READY + 32 * zst}")
            for q, s in enumerate("ab"):
                S.raw(f"v_add_u32 v{V_POOL + q}, {self.G['Z' + s].addr}, v{V_LIN}")
            S.raw("s_waitcnt lgkmcnt(0)")
            S.raw(f"v_cmp_ne_u32 vcc, 1, v{V_FLAG}")
            S.raw("s_nop 1")
            S.raw("s_cbranch_vccz L_zok")
            S.out.append(self.spin_guard("L_zok") + "s_branch L_zspin")
            S.out.append("L_zok:")
            for k in range(6):
                S.raw(f"ds_read_b128 {vr(OLD[4 * k], 4)}, v{V_POOL + k // 4} offset:{(k % 4) * 4096}")
        check(0, 4, 2)
        S.raw(f"s_add_u32 s{S_T1}, s{S_TAG}, 4")
        S.raw(f"v_mov_b32 v{V_FV}, s{S_T1}")
        S.raw("s_mov_b64 exec, 1")
        S.raw(f"buffer_store_dword v{V_FV}, v{V_ZERO}, {srd(SRD_WS)}, s{S_FLAGA} offen sc1")
        S.raw("s_mov_b64 exec, -1")
        S.raw("s_cbranch_vccz L_fa_ok")
        S.out.append("L_fa:")
        loads(0, 4)
        check(0, 4, 0)
        retry("L_fa", "L_fa")
        S.out.append("L_fa_ok:")
        accumulate(0, 4)
        check(4, 6, 1)
        S.raw("s_nop 0")
        S.raw("s_cbranch_vccz L_fb_ok")
        S.out.append("L_fb:")
        loads(4, 6)
        check(4, 6, 0)
        retry("L_fb", "L_fb")
        S.out.append("L_fb_ok:")
        if o["stamps"]:
            self.stamp(S, "polled")
        accumulate(4, 6)
        for p in range(8):
            a = T(3) + 2 * p
            d = T(6) + p
            S.raw(f"s_add_u32 s{S_T0}, s{S_OUTB}, {(8 * (p >> 1) + 2 * (p & 1)) * 2304}")
            S.raw(f"v_cvt_pk_bf16_f32 v{d}, v{a}, v{a + 1}")
            S.raw(f"buffer_store_short v{d}, v{V_OUTA}, {srd(SRD_OUT)}, s{S_T0} offen{o['out_mod']}")
            S.raw(f"buffer_store_short_d16_hi v{d}, v{V_OUTA}, {srd(SRD_OUT)}, s{S_T0} offen offset:2304{o['out_mod']}")

    def loader(self):
        o = self.o
        VV, VU1, VL, VDA, VTG, VPOLL, VPOLL2, VT, VZ, VRD, VL4 = range(10, 21)
        VONE = 22
        VX, VW, VK, VU0, VE, VF = 200, 204, 208, 212, 216, 220
        cm = o["common"]
        nrot = 9 - cm
        rot = f"""; position in the rotated part of the k range
s_bfe_u32 s{S_ROT}, s2, 0x20003
s_lshl_b32 s{S_ROT}, s{S_ROT}, 1
s_add_u32 s{S_ROT}, s{S_ROT}, s{S_B}
s_sub_u32 s{S_T0}, s{S_ROT}, {nrot}
s_cmp_ge_u32 s{S_ROT}, {nrot}
s_cselect_b32 s{S_ROT}, s{S_T0}, s{S_ROT}
"""
        first = f"""{rot if cm == 0 else ""}; x: rr*1152 + kh*64 + (c^phi)*16 + l*36864 + u*(9216-1024), phi = 2*(u&1) + (rr>>2)
v_bfe_u32 v5, v0, 2, 3
v_mul_u32_u24 v6, 1152, v5
v_lshrrev_b32 v3, 5, v0
v_lshl_add_u32 v6, v3, 6, v6
v_lshrrev_b32 v7, 2, v5
v_xor_b32 v7, v7, v0
v_and_b32 v7, 3, v7
v_lshl_add_u32 v8, v7, 4, v6
v_xor_b32 v7, 2, v7
v_lshl_add_u32 v9, v7, 4, v6
s_mul_i32 s{S_T0}, s{S_W}, 36864
v_add_u32 v{VX}, s{S_T0}, v8
v_add_u32 v9, s{S_T0}, v9
v_add_u32 v{VX + 1}, 8192, v9
v_add_u32 v{VX + 2}, 16384, v{VX}
v_add_u32 v{VX + 3}, 24576, v9
s_lshl_b32 s{S_L1024}, s{S_W}, 12
s_mul_i32 s{S_XB}, s{S_B}, 147456
s_mov_b32 s{SRD_X + 2}, {self.SIZES[SRD_X]}
s_mov_b32 s{SRD_X + 3}, 0x20000
{"s_memrealtime s[76:77]" if o["stamps"] else ""}
s_waitcnt lgkmcnt(0)
"""
        second = f"""; wq: r*8192 + t*64 + c*16 + (l&1)*131072 + (l>>1)*256 + u*(32768-1024)
v_bfe_u32 v1, v0, 2, 2
v_and_b32 v2, 3, v0
v_lshlrev_b32 v4, 2, v0
v_and_b32 v4, 0xc0, v4
v_lshl_add_u32 v4, v2, 4, v4
s_and_b32 s{S_T0}, s{S_W}, 1
s_lshl_b32 s{S_T0}, s{S_T0}, 17
s_lshr_b32 s{S_T1}, s{S_W}, 1
s_lshl_b32 s{S_T1}, s{S_T1}, 8
s_add_u32 s{S_T0}, s{S_T0}, s{S_T1}
v_lshl_add_u32 v{VW}, v1, 13, v4
v_add_u32 v{VW}, s{S_T0}, v{VW}
v_add_u32 v{VW + 1}, 31744, v{VW}
v_add_u32 v{VW + 2}, 63488, v{VW}
v_add_u32 v{VW + 3}, 95232, v{VW}
s_and_b32 s{S_O}, s2, 3
s_bfe_u32 s{S_J}, s2, 0x20003
s_lshl_b32 s{S_T0}, s{S_O}, 3
s_lshl_b32 s{S_T1}, s{S_J}, 1
s_add_u32 s{S_HD}, s{S_T0}, s{S_T1}
s_lshl_b32 s{S_WQB}, s{S_HD}, 8
s_mov_b32 s{SRD_WQ + 2}, {self.SIZES[SRD_WQ]}
s_mov_b32 s{SRD_WQ + 3}, 0x20000
"""
        third = f"""s_getpc_b64 s[{S_TAB}:{S_TAB + 1}]
L_pc1:
s_add_u32 s{S_TAB}, s{S_TAB}, L_ones-L_pc1
s_addc_u32 s{S_TAB + 1}, s{S_TAB + 1}, 0
v_mov_b32 v{VZ}, 0
s_lshl_b32 s{S_RDY}, s{S_W}, 3
{"" if cm == 0 else rot}s_barrier
"""
        assert nrot >= 7
        rest = self.ids() + self.srd_build([SRD_K, SRD_V, SRD_WO, SRD_WS, SRD_OUT, SRD_DBG]) + f"""; V: r*256 + t*64 + c*16 + l*4096 ; K: same with c^u
v_lshl_add_u32 v{VV}, v1, 8, v4
v_add_u32 v{VV}, s{S_L1024}, v{VV}
v_mov_b32 v{VK}, v{VV}
v_xor_b32 v{VK + 1}, 16, v{VV}
v_xor_b32 v{VK + 2}, 32, v{VV}
v_xor_b32 v{VK + 3}, 48, v{VV}
; wo: r*1152 + (t^3^o)*64 + c*16 + l*18432 + u*(4608-1024)
v_mul_u32_u24 v6, 1152, v1
s_xor_b32 s{S_T1}, s{S_O}, 3
s_lshl_b32 s{S_T1}, s{S_T1}, 6
v_xor_b32 v7, s{S_T1}, v4
v_add_u32 v6, v6, v7
s_mul_i32 s{S_T0}, s{S_W}, 18432
v_add_u32 v{VU0}, s{S_T0}, v6
v_add_u32 v{VU0 + 1}, 3584, v{VU0}
v_add_u32 v{VU0 + 2}, 7168, v{VU0}
v_add_u32 v{VU0 + 3}, 10752, v{VU0}
; 128-byte rows: (4*rg2+r)*1152 + t*64 + c*16 + l*36864 + u*(9216-1024)
v_lshl_add_u32 v8, v3, 2, v1
v_mul_u32_u24 v6, 1152, v8
s_mul_i32 s{S_T0}, s{S_W}, 36864
v_add_u32 v6, s{S_T0}, v6
v_and_b32 v7, 0x7f, v7
v_add_u32 v{VF}, v6, v7
v_add_u32 v{VF + 1}, 8192, v{VF}
v_add_u32 v{VF + 2}, 16384, v{VF}
v_add_u32 v{VF + 3}, 24576, v{VF}
v_and_b32 v7, 0x7f, v4
v_add_u32 v{VE}, v6, v7
v_add_u32 v{VE + 1}, 8192, v{VE}
v_add_u32 v{VE + 2}, 16384, v{VE}
v_add_u32 v{VE + 3}, 24576, v{VE}
; poll address: lane r -> flag of producer (j+r)&3, wave l
v_add_u32 v6, s{S_J}, v0
v_and_b32 v6, 3, v6
s_andn2_b32 s{S_T0}, s{S_CID}, 3
v_add_u32 v6, s{S_T0}, v6
v_lshlrev_b32 v6, 2, v6
v_add_u32 v6, s{S_W}, v6
v_lshlrev_b32 v{VU1}, 7, v6
v_lshlrev_b32 v6, 4, v0
v_add_u32 v{VL4}, s{S_L1024}, v6
s_lshl_b32 s{S_T0}, s{S_W}, 10
v_add_u32 v{VL}, s{S_T0}, v6
v_mul_u32_u24 v{VDA}, 516, v2
s_lshl_b32 s{S_KVB}, s{S_B}, 5
s_add_u32 s{S_KVB}, s{S_KVB}, s{S_HD}
s_lshl_b32 s{S_KVB}, s{S_KVB}, 15
s_mul_i32 s{S_OWNB}, s{S_HD}, {128 * 1152}
s_mul_i32 s{S_WOB}, s{S_O}, {1024 * 1152}
s_lshl_b32 s{S_T0}, s{S_J}, 8
s_add_u32 s{S_WOB}, s{S_WOB}, s{S_T0}
s_mov_b32 s{S_TAG}, 0
s_mov_b32 s{S_NEED}, 1
s_mov_b32 s{S_PCNT}, 0
s_{o['varsel']}
v_mov_b32 v{VPOLL}, 0
v_mov_b32 v{VPOLL2}, 0
v_mov_b32 v{VRD}, s{S_RDY}
v_mov_b32 v{VONE}, 1
v_mov_b32 v{VONE + 1}, 1
"""
        l8a = ""
        l8a += f"""s_cmp_lg_u32 s{S_W}, 0
s_cbranch_scc1 L_l8skip
v_and_b32 v1, 15, v0
s_lshl_b32 s{S_T0}, s{S_COMP}, 4
v_add_u32 v1, s{S_T0}, v1
v_lshlrev_b32 v1, 2, v1
v_add_u32 v1, s{S_J}, v1
v_lshlrev_b32 v1, 7, v1
s_add_u32 s{S_T1}, s{S_TAG}, 3
L_l8poll:
buffer_load_dword v2, v1, {srd(SRD_WS)}, 0 offen sc1
s_waitcnt vmcnt(0)
v_subrev_u32 v2, s{S_T1}, v2
v_cmp_lt_u32 vcc, 4, v2
s_nop 1
s_cbranch_vccz L_l8ok
s_sleep 2
""" + self.spin_guard("L_l8ok") + f"""s_branch L_l8poll
L_l8ok:
s_lshl_b32 s{S_T0}, s{S_CID}, 14
s_add_u32 s{S_T0}, s{S_T0}, {WS_L8}
"""
        R0 = 100
        for c in range(16):
            if c and c % 4 == 0:
                l8a += f"s_add_u32 s{S_T0}, s{S_T0}, 4096\n"
            l8a += f"buffer_load_dwordx4 v[{R0 + 4 * c}:{R0 + 3 + 4 * c}], v{VL}, {srd(SRD_WS)}, s{S_T0} offen offset:{(c % 4) * 1024} sc1\n"
        l8a += "L_l8skip:\n"
        t = first
        vm, known, gi = [], 0, -1
        pend_pub, tag_at, z_at = [], None, None
        slp = f"s_sleep {o['lsleep']}\n" if o["lsleep"] else ""
        curblk, seen_e, polling, quiet = None, 0, False, False
        zreg = {"Za": 32, "Zb": 48}

        def gettag():
            nonlocal tag_at
            if tag_at is None:
                return ""
            r = f"""s_waitcnt vmcnt({min(63, len(vm) - tag_at)})
v_readfirstlane_b32 s{S_TAG}, v{VTG}
s_nop 1
s_cmp_lg_u32 s{S_TAG}, 0
s_cbranch_scc1 L_ltagok
s_call_b64 s[{S_LINK}:{S_LINK + 1}], L_waittag
L_ltagok:
"""
            tag_at = None
            return r

        for pos, item in enumerate(self.items):
            name, _, var = item.partition("/")
            skip0 = f"s_cmp_lg_u32 s{S_VAR}, {int(var)}\ns_cbranch_scc1 L_skip{pos}\n" if var else ""
            skip1 = f"L_skip{pos}:\n" if var else ""
            if name.startswith("@tc"):
                st = [i for i, x in enumerate(self.stages) if x["name"] == name[3:]][0]
                t += f"""L_tc{pos}:
s_cmp_lg_u32 s{S_W}, 0
s_cbranch_scc1 L_tcx{pos}
s_bfe_u32 s{S_T0}, s2, 0x30003
v_and_b32 v8, 31, v0
v_lshl_add_u32 v8, v8, 3, s{S_T0}
v_lshlrev_b32 v8, 7, v8
v_add_u32 v9, L_back{st}-L_tc{pos}, v8
v_min_u32 v9, L_ones-L_tc{pos}, v9
v_min_u32 v8, L_compute-L_tc{pos}, v8
v_cmp_lt_u32 vcc, 31, v0
s_sub_u32 s{S_T0}, s{S_TAB}, L_ones-L_tc{pos}
s_subb_u32 s{S_T1}, s{S_TAB + 1}, 0
v_cndmask_b32 v8, v9, v8, vcc
global_load_dword v{VT}, v8, s[{S_T0}:{S_T1}]
L_tcx{pos}:
"""
                continue
            if name == "@tw1":
                t += skip0 + f"""v_lshrrev_b32 v1, 2, v0
s_lshl_b32 s{S_T0}, s{S_W}, 3
v_add_u32 v1, s{S_T0}, v1
v_mul_u32_u24 v1, 1152, v1
v_and_b32 v8, 3, v0
v_lshlrev_b32 v8, 7, v8
s_lshl_b32 s{S_T1}, s{S_J}, 8
v_add_u32 v9, s{S_T1}, v8
v_cmp_lt_u32 vcc, 128, v8
v_mov_b32 v8, 1024
s_nop 0
v_cndmask_b32 v9, v9, v8, vcc
v_add_u32 v1, v1, v9
s_mul_i32 s{S_T0}, s{S_B}, {32 * 1152}
s_add_u32 s{S_T0}, s{S_T0}, s{S_OWNB}
s_mov_b32 exec_hi, 0
s_mov_b32 exec_lo, 0x77777777
buffer_load_dword v{VT}, v1, {srd(SRD_WO)}, s{S_T0} offen
s_mov_b64 exec, -1
""" + skip1
                continue
            if name == "@tx":
                t += f"""s_add_u32 s{S_T0}, s{S_ROT}, {cm}
s_lshl_b32 s{S_T0}, s{S_T0}, 7
s_add_u32 s{S_T0}, s{S_T0}, s{S_XB}
s_mul_i32 s{S_T1}, s{S_W}, 36864
s_add_u32 s{S_T0}, s{S_T0}, s{S_T1}
v_mul_u32_u24 v8, 1152, v0
s_mov_b32 exec_hi, 0
buffer_load_dword v{VT}, v8, {srd(SRD_X)}, s{S_T0} offen
s_mov_b64 exec, -1
"""
                continue
            if name == "@two":
                t += skip0 + f"""v_lshrrev_b32 v1, 1, v0
s_lshl_b32 s{S_T0}, s{S_W}, 5
v_add_u32 v1, s{S_T0}, v1
v_mul_u32_u24 v1, 1152, v1
v_and_b32 v8, 1, v0
v_lshl_add_u32 v1, v8, 7, v1
s_mul_i32 s{S_T0}, s{S_B}, {128 * 1152}
s_add_u32 s{S_T0}, s{S_T0}, s{S_WOB}
buffer_load_dword v{VT}, v1, {srd(SRD_WO)}, s{S_T0} offen{o['two_mod']}
v_and_b32 v1, 7, v0
s_lshl_b32 s{S_T0}, s{S_W}, 3
v_add_u32 v1, s{S_T0}, v1
v_mul_u32_u24 v1, 1152, v1
s_mul_i32 s{S_T0}, s{S_B}, {32 * 1152}
s_add_u32 s{S_T0}, s{S_T0}, s{S_OWNB}
s_add_u32 s{S_T0}, s{S_T0}, 1024
s_mov_b64 exec, 0xff
buffer_load_dword v{VT}, v1, {srd(SRD_WO)}, s{S_T0} offen{o['two_mod']}
s_mov_b64 exec, -1
""" + skip1
                continue
            if name == "@tag":
                t += f"s_lshl_b32 s{S_T0}, s{S_COMP}, 2\nbuffer_load_dword v{VTG}, v{VZ}, {srd(SRD_DBG)}, s{S_T0} offen sc1\n"
                vm.append("tag")
                tag_at = len(vm)
                continue
            if name == "@zflag":
                t += gettag() + f"""s_waitcnt vmcnt({min(63, len(vm) - z_at)})
s_add_u32 s{S_T1}, s{S_TAG}, 1
s_lshl_b32 s{S_T0}, s{S_CID}, 2
s_add_u32 s{S_T0}, s{S_T0}, s{S_W}
s_lshl_b32 s{S_T0}, s{S_T0}, 7
v_mov_b32 v4, s{S_T1}
s_mov_b64 exec, 1
buffer_store_dword v4, v{VZ}, {srd(SRD_WS)}, s{S_T0} offen offset:4 sc1
s_mov_b64 exec, -1
"""
                vm.append("zf")
                continue
            mode = ""
            if name[1] == ":":
                mode, name = name[0], name[2:]
            g = self.G[name]
            k, kw = g.kind, g.kw
            npc = 2 if name == "Zb" else 4
            t += f"; ---- {pos} {item} slot {g.slot} free_req {g.free_req} need {g.need}\n"
            if mode == "R":
                t += f"s_lshl_b32 s{S_T0}, s{S_CID}, 15\n"
                for u in range(0 if o.get("noz") else npc):
                    d = zreg[name] + 4 * u
                    t += f"s_add_u32 s{S_SOFF}, s{S_T0}, {WS_PART + kw['sub'] * 16384 + u * 4096}\n"
                    t += f"buffer_load_dwordx4 v[{d}:{d + 3}], v{VL}, {srd(SRD_WS)}, s{S_SOFF} offen{o['pre_mod']}\n"
                    vm.append("z")
                z_at = len(vm)
                continue
            gi += 1
            t += skip0
            if g.free_req > known and not o.get('nofree'):
                off = LDS_DONE + 4 * (63 - (g.free_req - 1))
                if not var:
                    known = g.free_req
                ps = f"s_call_b64 s[{S_LINK}:{S_LINK + 1}], L_pollstep\n" if polling else slp
                t += f"L_fchk{pos}:\nds_read_b32 v4, v{VDA} offset:{off}\ns_waitcnt lgkmcnt(0)\nv_cmp_ne_u32 vcc, 1, v4\ns_nop 1\ns_cbranch_vccz L_fok{pos}\n"
                t += ps + self.spin_guard(f"L_fok{pos}") + f"s_branch L_fchk{pos}\nL_fok{pos}:\n"
            if mode == "D":
                if not quiet:
                    t += l8a + "s_waitcnt vmcnt(0)\n"
                    quiet = True
                t += f"v_add_u32 v5, {g.addr}, v{VL}\n"
                for u in range(npc):
                    d = zreg[name] + 4 * u
                    t += f"ds_write_b128 v5, v[{d}:{d + 3}] offset:{u * 4096}\n"
                if name == "Zb":
                    t += f"s_mov_b64 exec, 1\nds_write_b64 v{VRD}, v[{VONE}:{VONE + 1}] offset:{LDS_READY + 32 * g.need}\ns_mov_b64 exec, -1\n"
                continue
            if k == "o" and kw["h"] + 1 > seen_e:
                e = seen_e = kw["h"] + 1
                t += gettag() + f"""L_rw{pos}:
s_cmp_gt_u32 s{S_NEED}, {e}
s_cbranch_scc1 L_rok{pos}
s_call_b64 s[{S_LINK}:{S_LINK + 1}], L_pollstep
""" + self.spin_guard(f"L_rok{pos}") + f"s_branch L_rw{pos}\nL_rok{pos}:\n"
                polling = e == 1
            if k in ("x", "wq") and kw["i"] != curblk:
                curblk = kw["i"]
                if o.get("rot2"):
                    if curblk >= 1:
                        t += f"s_add_u32 s{S_BLK}, s{S_J}, s{S_B}\ns_add_u32 s{S_BLK}, s{S_BLK}, {curblk}\ns_and_b32 s{S_BLK}, s{S_BLK}, 3\ns_add_u32 s{S_BLK}, s{S_BLK}, {1 if curblk < 5 else 5}\n"
                elif curblk >= cm:
                    t += f"s_add_u32 s{S_BLK}, s{S_ROT}, {cm}\ns_add_u32 s{S_ROT}, s{S_ROT}, 1\ns_cmp_eq_u32 s{S_ROT}, {nrot}\ns_cselect_b32 s{S_ROT}, 0, s{S_ROT}\n"
            gb = S_GB
            four = lambda b: [b, b + 1, b + 2, b + 3]
            if k == "x":
                v, r, off, mod = four(VX), SRD_X, 0, o["x_mod"]
                if kw["i"] < cm:
                    gb, off = S_XB, kw["i"] * 128
                else:
                    t += f"s_lshl_b32 s{S_GB}, s{S_BLK}, 7\ns_add_u32 s{S_GB}, s{S_GB}, s{S_XB}\n"
            elif k == "wq":
                v, r, mod, off = four(VW), SRD_WQ, o["wq_mod"], kw["sub"] * 32 * 8192
                if kw["i"] < cm:
                    gb, off = S_WQB, off + (kw["i"] << 19)
                else:
                    t += f"s_lshl_b32 s{S_GB}, s{S_BLK}, 19\ns_add_u32 s{S_GB}, s{S_GB}, s{S_WQB}\n"
            elif k in ("k", "v"):
                gb = S_KVB
                v, r = (four(VK), SRD_K) if k == "k" else ([VV] * 4, SRD_V)
                off, mod = kw["h"] * 32768 + kw["sub"] * 16384, o["kv_mod"]
            elif k in ("wo", "fin"):
                t += f"s_add_u32 s{S_GB}, s{S_J}, {kw['r']}\ns_and_b32 s{S_GB}, s{S_GB}, 3\ns_mul_i32 s{S_GB}, s{S_GB}, {256 * 1152}\ns_add_u32 s{S_GB}, s{S_GB}, s{S_WOB}\n"
                r, mod = SRD_WO, o["wo_mod"]
                if k == "wo":
                    v, off = four(VU0), (kw["h"] * 128 + kw["sub"] * 64) * 1152
                else:
                    t += f"s_lshr_b32 s{S_T0}, s{S_O}, 1\ns_xor_b32 s{S_T0}, s{S_T0}, {kw['sub'] ^ 1}\ns_lshl_b32 s{S_T0}, s{S_T0}, 7\ns_add_u32 s{S_GB}, s{S_GB}, s{S_T0}\n"
                    v, off = four(VF), 128 * 1152
            elif k == "l8":
                gb = S_OWNB
                v, r, off, mod = four(VE), SRD_WO, kw["h"] * 128 * 1152 + 1024, o["wo_mod"]
            elif k == "o":
                t += f"s_add_u32 s{S_GB}, s{S_J}, {kw['r']}\ns_and_b32 s{S_GB}, s{S_GB}, 3\ns_andn2_b32 s{S_T0}, s{S_CID}, 3\ns_add_u32 s{S_GB}, s{S_GB}, s{S_T0}\ns_mul_i32 s{S_GB}, s{S_GB}, {o['ostride']}\n"
                v, r, off, mod = [VL4] * 4, SRD_WS, WS_O + kw["h"] * 32768 + kw["sub"] * 16384, o["o_mod"]
            t += f"s_add_u32 m0, s{S_L1024}, {g.addr}\ns_add_u32 s{S_SOFF}, s{gb}, {off}\n"
            for u in range(4):
                t += f"buffer_load_dwordx4 v{v[u]}, {srd(r)}, s{S_SOFF} offen offset:{u * 1024}{mod} lds\n"
                if not var:
                    vm.append(g.name)
            pend_pub.append(g)
            if gi == 0:
                t += second
                continue
            if gi == 1:
                t += third
            nxt = self.items[pos + 1] if pos + 1 < len(self.items) else ""
            if o["merge"] and not var and nxt in self.G and self.G[nxt].need == g.need and len(pend_pub) == 1:
                t += f"s_waitcnt vmcnt({o['thr']})\n" if gi > 2 else ""
                continue
            if len(pend_pub) == 2 and pend_pub[0].need == pend_pub[1].need:
                pubs = [(g.need, 0, 3)]
            else:
                pubs = []
                for pg in pend_pub:
                    new = self.stages[pg.need]["new"]
                    pubs.append((pg.need, new.index(pg), 3 if len(new) == 1 else 1))
            for st, kk, ex in pubs:
                t += f"s_add_u32 m0, s{S_RDY}, {LDS_READY + 32 * st + 4 * kk}\ns_mov_b64 exec, {ex}\n"
                t += f"global_load_lds_dword v{VZ}, s[{S_TAB}:{S_TAB + 1}]\ns_mov_b64 exec, -1\n"
                if not var:
                    vm.append("f")
            pend_pub = []
            if gi == 2:
                t += "s_branch L_lrest\n" + self.cstub() + "L_lrest:\n" + rest
                if o["stamps"]:
                    t += self.lstamp("start")
            if gi > 2:
                t += f"s_waitcnt vmcnt({o['thr']})\n"
                if o["stamps"] and not var and (o.get("only") is None or g.name in o["only"]):
                    t += self.lstamp(g.name)
            t += skip1
        if o["clear"]:
            t += l8a + "s_waitcnt vmcnt(0)\n"
        t += f"s_cmp_lg_u32 s{S_W}, 0\ns_cbranch_scc1 L_ldone\n"
        t += f"""v_and_b32 v1, 31, v0
v_lshrrev_b32 v2, 5, v0
v_and_b32 v5, 19, v1
v_bfe_u32 v6, v1, 2, 1
v_lshl_add_u32 v5, v6, 3, v5
v_bfe_u32 v6, v1, 3, 1
v_lshl_add_u32 v5, v6, 2, v5
v_mul_u32_u24 v6, {4 * 2304}, v2
v_lshl_add_u32 v9, v5, 1, v6
s_lshl_b32 s{S_T0}, s{S_B}, 2
s_add_u32 s{S_T0}, s{S_T0}, s{S_J}
s_lshl_b32 s{S_T0}, s{S_T0}, 2
s_add_u32 s{S_T0}, s{S_T0}, s{S_O}
s_mul_i32 s{S_T0}, s{S_T0}, {8 * 2304}
s_mul_i32 s{S_T1}, s{S_P}, 1152
s_add_u32 s{S_T0}, s{S_T0}, s{S_T1}
s_add_u32 s{S_T0}, s{S_T0}, 1024
"""
        A0 = 90
        for c in range(16):
            for d in range(4):
                s = R0 + 4 * c + d
                if c == 0:
                    t += f"v_lshlrev_b32 v{A0 + 2 * d}, 16, v{s}\nv_and_b32 v{A0 + 1 + 2 * d}, 0xffff0000, v{s}\n"
                else:
                    t += f"v_lshlrev_b32 v2, 16, v{s}\nv_and_b32 v3, 0xffff0000, v{s}\n"
                    t += f"v_pk_add_f32 v[{A0 + 2 * d}:{A0 + 1 + 2 * d}], v[{A0 + 2 * d}:{A0 + 1 + 2 * d}], v[2:3]\n"
        for d in range(4):
            tt, p = d >> 1, d & 1
            t += f"v_cvt_pk_bf16_f32 v{4 + d}, v{A0 + 2 * d}, v{A0 + 1 + 2 * d}\n"
            t += f"s_add_u32 s{S_T1}, s{S_T0}, {2 * p * 2304}\n"
            t += f"buffer_store_short v{4 + d}, v9, {srd(SRD_OUT)}, s{S_T1} offen offset:{tt * 64}{o['out_mod']}\n"
            t += f"buffer_store_short_d16_hi v{4 + d}, v9, {srd(SRD_OUT)}, s{S_T1} offen offset:{tt * 64 + 2304}{o['out_mod']}\n"
        t += "L_ldone:\n"
        if o["stamps"]:
            self.lnames.append("done")
            t += self.stamp_out([240, 241], len(self.lnames) - 1)
        t += "s_endpgm\n"
        pst = f"s_memrealtime s[60:61]\ns_add_u32 m0, s{S_NEED}, 40\ns_waitcnt lgkmcnt(0)\nv_writelane_b32 v241, s60, m0\n" if o.get("fstamps") else ""
        t += f"""L_pollstep:
s_sleep {o["psleep"]}
s_cmp_ge_u32 s{S_NEED}, 3
s_cbranch_scc1 L_pret
s_add_u32 s{S_PCNT}, s{S_PCNT}, 1
s_mov_b64 exec, 15
s_and_b32 s{S_T1}, s{S_PCNT}, {o["pslow"]}
s_cbranch_scc1 L_pfast
buffer_load_dword v{VPOLL}, v{VU1}, {srd(SRD_WS)}, 0 offen sc1
s_branch L_pwait
L_pfast:
s_mov_b32 s{S_T0}, {WS_FLAGS2}
buffer_load_dword v{VPOLL2}, v{VU1}, {srd(SRD_WS)}, s{S_T0} offen sc1
L_pwait:
s_waitcnt vmcnt(0)
L_pagain:
s_mov_b64 exec, 15
s_add_u32 s{S_T1}, s{S_TAG}, s{S_NEED}
s_sub_u32 s{S_T3}, 7, s{S_NEED}
v_subrev_u32 v4, s{S_T1}, v{VPOLL}
v_subrev_u32 v5, s{S_T1}, v{VPOLL2}
v_min_u32 v4, v4, v5
v_cmp_lt_u32 vcc, s{S_T3}, v4
s_mov_b64 exec, -1
s_nop 0
s_cbranch_vccnz L_pret
{pst}s_add_u32 s{S_NEED}, s{S_NEED}, 1
s_cmp_lt_u32 s{S_NEED}, 3
s_cbranch_scc1 L_pagain
L_pret:
s_setpc_b64 s[{S_LINK}:{S_LINK + 1}]
L_waittag:
s_lshl_b32 s{S_T0}, s{S_COMP}, 2
L_wrtag:
buffer_load_dword v4, v{VZ}, {srd(SRD_DBG)}, s{S_T0} offen sc1
s_waitcnt vmcnt(0)
v_readfirstlane_b32 s{S_TAG}, v4
s_nop 1
s_cmp_lg_u32 s{S_TAG}, 0
s_cbranch_scc1 L_wrret
""" + self.spin_guard("L_wrret") + f"""s_branch L_wrtag
L_wrret:
s_setpc_b64 s[{S_LINK}:{S_LINK + 1}]
"""
        return t

    def generate(self):
        o = self.o
        self.build_mfma()
        self.alloc_slots()
        self.build_fillers()
        S = Stream()
        if o["stamps"]:
            self.stamp(S, "start")
        self.compute_stream(S)
        self.compute_tail(S)
        t = f"; @launch grid=(256,1,1) block=(512,1,1) lds={LDS_BYTES}\n"
        t += f""".amdgcn_target "amdgcn-amd-amdhsa--gfx950"
.text
.globl {KNAME}
.p2align 8
.type {KNAME},@function
{KNAME}:
"""
        t += self.prologue() + self.loader() + ".p2align 6\nL_compute:\n" + "s_nop 0\n" * o.get("cphase", 0) + self.compute_prologue() + S.text()
        if o["stamps"]:
            self.cnames.append("done")
            t += self.stamp_out([V_ST], len(self.cnames) - 1)
        t += "L_end:\ns_endpgm\n"
        for st in self.spins:
            t += f"""L_spin{st}:
ds_read_b32 v{V_FLAG}, v{V_FA} offset:{LDS_READY + 32 * st}
s_waitcnt lgkmcnt(0)
v_cmp_ne_u32 vcc, 1, v{V_FLAG}
s_nop 1
s_cbranch_vccz L_back{st}
{"s_sleep %d" % o["csleep"] if o.get("csleep") is not None else ""}
""" + self.spin_guard(f"L_back{st}") + f"s_branch L_spin{st}\n"
        t += f"""L_lead:
s_waitcnt vmcnt({S.marks["lead"]})
v_bfe_u32 v{V_MX0}, v{V_MX0}, 3, 8
v_bfe_u32 v{V_MX1}, v{V_MX1}, 3, 8
v_bfe_u32 v{V_MC}, v{V_MC}, 3, 8
s_mov_b32 s{S_T1}, 0
L_scan:
v_cmp_eq_u32 vcc, s{S_T1}, v{V_MX0}
v_cmp_eq_u32 s[{S_T2}:{S_T3}], s{S_T1}, v{V_MX1}
v_cmp_eq_u32 s[84:85], s{S_T1}, v{V_MC}
s_nop 1
s_or_b64 vcc, vcc, s[{S_T2}:{S_T3}]
s_or_b64 vcc, vcc, s[84:85]
s_cbranch_vccz L_scandone
s_add_u32 s{S_T1}, s{S_T1}, 1
s_branch L_scan
L_scandone:
s_lshl_b32 s{S_T1}, s{S_T1}, 3
s_or_b32 s{S_T1}, s{S_T1}, 0x800
v_mov_b32 v{V_TMP1}, s{S_T1}
s_mov_b64 exec, 1
buffer_store_dword v{V_TMP1}, v{V_ZERO}, {srd(SRD_DBG)}, s{S_T4} offen sc1
s_mov_b64 exec, -1
s_branch L_leadret
L_tagspin:
buffer_load_dword v{V_TAG}, v{V_ZERO}, {srd(SRD_DBG)}, s{S_T4} offen sc1
s_waitcnt vmcnt(0)
v_cmp_eq_u32 vcc, 0, v{V_TAG}
s_nop 1
s_cbranch_vccz L_tagok
""" + self.spin_guard("L_tagok") + f"""s_branch L_tagspin
L_fslow:
buffer_load_dword v{V_TMP1}, v{V_TMP0}, {srd(SRD_WS)}, 0 offen sc1
s_add_u32 s{S_T1}, s{S_TAG}, 4
s_waitcnt vmcnt(0)
v_subrev_u32 v{V_TMP1}, s{S_T1}, v{V_TMP1}
v_cmp_lt_u32 vcc, 3, v{V_TMP1}
s_add_u32 s{S_SPIN}, s{S_SPIN}, 1
s_cmp_gt_u32 s{S_SPIN}, {o['spin_limit']}
s_cbranch_scc1 L_fforce
s_cbranch_vccnz L_fsret
L_fforce:
s_bitset1_b32 s{S_GOT}, 31
L_fsret:
s_setpc_b64 s[{S_LINK}:{S_LINK + 1}]
L_ownspin:
buffer_load_dword v{V_TMP1}, v{V_TMP0}, {srd(SRD_WS)}, 0 offen offset:{0 if o['clear'] else 4} sc1
s_waitcnt vmcnt(0)
v_subrev_u32 v{V_TMP1}, s{S_T1}, v{V_TMP1}
v_cmp_lt_u32 vcc, 6, v{V_TMP1}
s_nop 1
s_cbranch_vccz L_ownok
""" + self.spin_guard("L_ownok") + "s_branch L_ownspin\n"
        t += f""".p2align 6
L_ones:
.fill 128, 4, 1
L_codeend:
.section .rodata,"a"
.p2align 6
.amdhsa_kernel {KNAME}
  .amdhsa_next_free_vgpr 256
  .amdhsa_next_free_sgpr 102
  .amdhsa_accum_offset 256
  .amdhsa_group_segment_fixed_size 0
  .amdhsa_kernarg_size 104
  .amdhsa_user_sgpr_count 2
  .amdhsa_user_sgpr_kernarg_segment_ptr 1
  .amdhsa_system_sgpr_workgroup_id_x 1
  .amdhsa_float_denorm_mode_32 3
.end_amdhsa_kernel
"""
        self.stats = dict(nops=S.nops, waits=S.nwaits, instr=S.ninstr, mfma=len(self.ms), stages=len(self.stages))
        return t


if __name__ == "__main__":
    import json
    opt = json.loads(sys.argv[2]) if len(sys.argv) > 2 else {}
    g = Gen(**opt)
    txt = g.generate()
    open(sys.argv[1], "w").write(txt)
    json.dump([g.cnames, g.lnames], open(sys.argv[1] + ".names", "w"))
    print(g.stats, file=sys.stderr)
```

```python
import sys
from emit import *

KNAME = "concat_heads__mha_block_cached__gqa_block_cached__near_ridge_kernel"

SEQ = ("Q00 Q01 Q02 Q03 Q04 Q05 Q06 Q07 Q08 Q10 S0 Q11 Q12 Q13 Q14 PV0 Q15 P00a Q16 P00b Q17 L80 Q18 "
       "P10a S1 P10b P20a P20b PV1 P30a P01a P01b L81 P30b P11a P11b FIN")
DEFAULT = dict(
    stamps=False, la=4, budget=5, thr=10, common=1, seq=SEQ, nvar=4, step=1,
    moves={"K0a": 4, "K0b": 4, "V0a": 4, "V0b": 4, "K1a": 4, "K1b": 4, "V1a": 3, "V1b": 3, "@two": (0, 24)},
    special={"X13": ["@tag"], "X18": ["R:Za", "R:Zb"], "U20a": ["@zflag"]},
    kv_mod=" nt", x_mod="", wq_mod="", wo_mod="", o_mod="", two_mod="", ost_mod=" sc1", pst_mod=" sc1", pld_mod=" sc1",
    pre_mod=" sc1 nt", out_mod="",
    pairwait=True, late=True, late_lead=30, pk=True, lsleep=1, psleep=2, pslow=15, cprio=3,
    e0_split=60, pace=[(6, 4), (4, 2), (14, 3)], e1_at=80, e2_at=60, e3_at=60, own_at=14, lead_at=30, n1_start=3, n1_step=2,
    ostride=65536, varsel="bfe_u32 s100, s2, 0x20005", spin_limit=1 << 18,
)

WS_FLAGS2 = 0x40000
WS_O = 0x100000
WS_PART = 0x1400000
WS_L8 = 0x1c00000
WS_STAMP = 0x8000000
LDS_READY = 0x000
LDS_DONE = 0x7f0
SLOT0 = 4096
SLOT = 16384
NSLOT = 9
LDS_BYTES = SLOT0 + NSLOT * SLOT

S_WAVE, S_P, S_O, S_B, S_J, S_COMP, S_CID, S_W = 3, 4, 5, 6, 7, 8, 9, 10
SRD_X, SRD_K, SRD_V, SRD_WQ, SRD_WO, SRD_WS, SRD_OUT, SRD_DBG = 12, 16, 20, 24, 28, 32, 36, 40
S_T0, S_T1, S_T2, S_T3 = 44, 45, 46, 47
S_TAG, S_SPIN, S_SCALE, S_T4 = 56, 57, 58, 59
S_STAMP = 60
S_LINK = 92
S_NEED, S_RDY = 94, 95
S_TAB = 96
S_L1024, S_SOFF, S_VAR, S_PCNT = 98, 99, 100, 101
S_XB, S_WQB, S_KVB, S_WOB, S_BLK, S_OWNB, S_GB, S_ROT, S_HD = 48, 49, 50, 51, 52, 53, 54, 55, 11
S_OST, S_FLAGA, S_PARTB, S_L8B, S_OUTB, S_INBOX, S_LEAD, S_GOT, S_DEC = 48, 49, 50, 51, 52, 53, 54, 55, 11


def srd(r):
    return f"s[{r}:{r + 3}]"


class Group:
    def __init__(self, name, kind, **kw):
        self.name, self.kind, self.kw = name, kind, kw
        self.need = self.last = self.slot = None
        self.free_req = 0

    @property
    def addr(self):
        return SLOT0 + self.slot * SLOT


def build_groups():
    G = {}

    def add(name, kind, **kw):
        G[name] = Group(name, kind, **kw)
    for h in range(2):
        for i in range(9):
            add(f"X{h}{i}", "x", i=i, h=h)
            add(f"W{h}{i}", "wq", i=i, h=h)
    for h in range(2):
        for s, sub in enumerate("ab"):
            add(f"K{h}{sub}", "k", h=h, sub=s)
            add(f"V{h}{sub}", "v", h=h, sub=s)
            for r in range(4):
                add(f"U{r}{h}{sub}", "fin" if h == 1 and r >= 2 else "wo", r=r, h=h, sub=s)
                if r:
                    add(f"O{r}{h}{sub}", "o", r=r, h=h, sub=s)
        add(f"E{h}", "l8", h=h)
    add("Za", "z", sub=0)
    add("Zb", "z", sub=1)
    return G


def make_order(G, moves, nvar=4, step=1, special=None):
    base = sorted([g for g in G.values() if g.kind != "z"], key=lambda g: (g.need, g.kind == "o", g.seq))
    names = [g.name for g in base]
    fixed = [n for n in names if n not in moves]
    ins = {}
    for n, d in moves.items():
        nxt = [q for q in names[names.index(n):] if q in fixed][0] if n in names else None
        p0 = fixed.index(nxt) if nxt else d[1]
        dd = d if nxt else 0
        for v in range(nvar):
            ins.setdefault(max(p0 - dd - (nvar - 1 - v) * step, 3), []).append((nvar - 1 - v, n + (f"/{v}" if nvar > 1 else "")))
    o = []
    for p, n in enumerate(fixed):
        o += [x for _, x in ins.get(p, [])]
        o += (special or {}).get(n, [])
        o.append(n)
    return o + ["D:Za", "D:Zb"]


def T(i):
    return 16 * i


ARING, NA = 192, 6
BRING, NB = 216, 3
V_TR, V_TR8, V_XB0, V_XB1, V_KB0, V_KB1, V_LIN = 228, 229, 230, 231, 232, 233, 234
V_ZERO, V_FA, V_FLAG = 235, 236, 238
V_POOL, NPOOL = 239, 5
V_MX0, V_MX1, V_MC, V_SUM1, V_ST, V_SUM0, V_TMP0, V_TMP1, V_TAG, V_FV, V_OUTA = 244, 245, 246, 248, 249, 250, 251, 252, 253, 254, 255


class Load:
    def __init__(self, group, pat, offs, ring, reg=None):
        self.group, self.pat, self.offs, self.ring, self.reg = group, pat, offs, ring, reg


class M:
    def __init__(self, d, a, b, c0, stage, extra=()):
        self.d, self.a, self.b, self.c0, self.stage, self.extra = d, a, b, c0, stage, list(extra)


def tr_load(g, ks, t, extra=0):
    base = extra + ks * 4096 + t * 256
    return Load(g, V_TR, [base, base + 1024], "A")


def tr8_load(g, s, t):
    base = s * 2048 + t * 256
    return Load(g, V_TR8, [base, base + 512], "A")


class Gen:
    def __init__(self, **opt):
        self.o = dict(DEFAULT)
        self.o.update(opt)
        self.G = build_groups()
        self.stages, self.ms, self.mark = [], [], {}
        self.cnames, self.lnames = [], []
        self.tm = 's_memrealtime'

    def stage(self, name):
        self.stages.append(dict(name=name, new=[]))
        self.mark["st_" + name] = len(self.ms)
        return len(self.stages) - 1

    def use(self, g, st):
        if g.need is None:
            g.need = st
            g.seq = len(self.ms)
            self.stages[st]["new"].append(g)
            assert len(self.stages[st]["new"]) <= 2 or g.kind == "z"
        g.last = st

    def add(self, d, a, b, c0, st, extra=()):
        for x in [a, b] + list(extra):
            if isinstance(x, Load):
                self.use(x.group, st)
        self.ms.append(M(d, a, b, c0, st, extra))
        return len(self.ms) - 1

    def build_mfma(self):
        G, mk = self.G, self.mark
        def qp(hh, i):
            st = self.stage(f"Q{hh}{i}")
            for ks in range(4):
                xf = Load(G[f"X{hh}{i}"], V_XB0 + (ks & 1), [(ks >> 1) * 512], "B")
                for t in range(4):
                    mk[f"Qend{hh}{t}"] = self.add(T(4 * hh + t), tr_load(G[f"W{hh}{i}"], ks, t), xf, i == 0 and ks == 0, st)

        def sc(hh):
            for sub in range(2):
                K = G[f"K{hh}{'ab'[sub]}"]
                st = self.stage(f"S{hh}{'ab'[sub]}")
                for ktl in range(2):
                    kt = 2 * sub + ktl
                    for s in range(8):
                        a = Load(K, V_KB0 + (s & 1), [ktl * 8192 + (s >> 1) * 256], "A")
                        idx = self.add(T(4 * hh + kt), a, T(8) + 4 * s, s == 0, st)
                        mk.setdefault(f"S{hh}use{s}", idx)
                        mk[f"Send{hh}{kt}"] = idx

        ob = [T(8), T(4)]

        def pv(hh):
            for sub in range(2):
                V = G[f"V{hh}{'ab'[sub]}"]
                st = self.stage(f"PV{hh}{'ab'[sub]}")
                for sl in range(4):
                    s = 4 * sub + sl
                    for dt in range(4):
                        mk[f"PVend{hh}{dt}"] = self.add(T(4 * hh + dt), tr_load(V, sl, dt), T(8) + 4 * s, s == 0, st)

        def proj(r, hh, sub):
            if True:
                U = G[f"U{r}{hh}{'ab'[sub]}"]
                st = self.stage(f"P{r}{hh}{'ab'[sub]}")
                for sl in range(4):
                    s = 4 * sub + sl
                    a = ob[hh] + 4 * s if r == 0 else Load(G[f"O{r}{hh}{'ab'[sub]}"], V_LIN, [sl * 4096], "B")
                    for t in range(4):
                        idx = self.add(T(t), a, tr_load(U, sl, t), r == 0 and hh == 0 and s == 0, st)
                        if r == 0:
                            mk.setdefault(f"own{hh}use{s}", idx)
                            mk[f"own{hh}last"] = idx

        def l8(hh):
            st = self.stage(f"L8{hh}")
            for s in range(8):
                for t in range(2):
                    mk[f"L8end{hh}{t}"] = self.add(T(10 + t), ob[hh] + 4 * s, tr8_load(G[f"E{hh}"], s, t), hh == 0 and s == 0, st)

        for w in self.o["seq"].split():
            if w[0] == "Q":
                qp(int(w[1]), int(w[2]))
            elif w[0] == "S":
                sc(int(w[1]))
            elif w[:2] == "PV":
                pv(int(w[2]))
            elif w[0] == "L":
                l8(int(w[2]))
            elif w[0] == "P":
                proj(int(w[1]), int(w[2]), "ab".index(w[3]))
        FR = T(6)
        for lam in range(2):
            for e in range(2):
                for r in (2, 3):
                    if e == 0:
                        sts = self.fin_st = getattr(self, "fin_st", {})
                    for half in range(2):
                        if lam == 0 and e == 0:
                            st = self.stage(f"F{r}{'ab'[half]}")
                        elif (r, half) == (2, 0):
                            st = self.stage(f"G{2 * lam + e}")
                        for sl in range(4):
                            s = 4 * half + sl
                            a = FR + 32 * (r - 2) + 4 * s
                            if lam == 0 and e == 0:
                                a = Load(G[f"O{r}1{'ab'[half]}"], V_LIN, [sl * 4096], "R", a)
                            mk[f"fin{2 * lam + e}"] = self.add(T(2 * lam + e), a, tr8_load(G[f"U{r}1{'ab'[lam]}"], s, e), False, st)
        st = self.stage("tail")
        self.use(G["Za"], st)
        self.use(G["Zb"], st)

    def alloc_slots(self):
        o = self.o
        order = make_order(self.G, o["moves"], o["nvar"], o["step"], o["special"])
        self.items = order
        names = []
        for n in order:
            n = n.split("/")[0]
            if n.startswith("R:") or n.startswith("@"):
                continue
            n = n[2:] if n.startswith("D:") else n
            if n not in names:
                names.append(n)
        assert sorted(names) == sorted(self.G.keys()), set(self.G) ^ set(names)
        free = [0] * NSLOT
        for n in names:
            g = self.G[n]
            k = min(range(NSLOT), key=lambda i: free[i])
            g.slot, g.free_req = k, free[k]
            assert g.free_req <= g.need, (g.name, g.free_req, g.need)
            free[k] = g.last + 1
        self.max_free = max(g.free_req for g in self.G.values())

    def build_fillers(self):
        mk, o = self.mark, self.o
        F = []
        A = self.A = {}

        def put(x, after=None, before=None, alt=None):
            F.append((x if isinstance(x, list) else [x], after, before, alt if o["pk"] else None))

        def cvt(d, a, b):
            return valu(f"v_cvt_pk_bf16_f32 v{d}, v{a}, v{b}", rd=[a, b], wr=[d])

        def store4(d, sreg, mod, tag=None):
            return I(f"buffer_store_dwordx4 {vr(d, 4)}, v{V_LIN}, {srd(SRD_WS)}, s{sreg} offen{mod}", "vst", rd=rng(d, 4) + [V_LIN], tag=tag)

        put([salu(f"s_cmp_lg_u32 s{S_LEAD}, 0"), I("s_cbranch_scc0 L_lead", "br"), label("L_leadret"), I("", "markvm", tag="lead")],
            after=o["lead_at"], before=60)
        put(I(f"buffer_load_dword v{V_TAG}, v{V_ZERO}, {srd(SRD_DBG)}, s{S_T4} offen sc1", "vld", rd=[V_ZERO], wr=[V_TAG]), after=118, before=140)
        put([valu(f"v_cmp_eq_u32 vcc, 0, v{V_TAG}", rd=[V_TAG]), salu("s_nop 0"), I("s_cbranch_vccnz L_tagspin", "br"), label("L_tagok"),
             valu(f"v_readfirstlane_b32 s{S_TAG}, v{V_TAG}", rd=[V_TAG], sw=[S_TAG])], after=250, before=262)
        def cvtq(hh):
            for t in range(4):
                for p in range(8):
                    s = 2 * t + (p >> 2)
                    after = mk[f"Qend{hh}{t}"] if hh == 0 else max(mk[f"Qend1{t}"], mk["L8end01"], mk["own0last"])
                    put(cvt(T(8) + 8 * t + p, T(4 * hh + t) + 2 * p, T(4 * hh + t) + 2 * p + 1),
                        after=after, before=min(mk[f"S{hh}use{s}"], mk[f"S{hh}use0"] + 8 * t))

        def maxes(hh):
            for kt in range(4):
                b = T(4 * hh + kt)
                mx = V_MX0 + (kt & 1)
                for p in range(8):
                    if kt < 2 and p == 0:
                        put(valu(f"v_max_f32 v{mx}, v{b}, v{b + 1}", rd=[b, b + 1], wr=[mx]), after=mk[f"Send{hh}{kt}"])
                    else:
                        put(valu(f"v_max3_f32 v{mx}, v{mx}, v{b + 2 * p}, v{b + 2 * p + 1}", rd=[mx, b + 2 * p, b + 2 * p + 1], wr=[mx]),
                            after=mk[f"Send{hh}{kt}"])
            put(valu(f"v_max_f32 v{V_MX0}, v{V_MX0}, v{V_MX1}", rd=[V_MX0, V_MX1], wr=[V_MX0]))
            put(valu(f"v_mov_b32 v{V_MX1}, v{V_MX0}", rd=[V_MX0], wr=[V_MX1]))
            put(I(f"v_permlane32_swap_b32 v{V_MX0}, v{V_MX1}", "perm", rd=[V_MX0, V_MX1], wr=[V_MX0, V_MX1]))
            put(valu(f"v_max_f32 v{V_MX0}, v{V_MX0}, v{V_MX1}", rd=[V_MX0, V_MX1], wr=[V_MX0]))
            put(valu(f"v_mul_f32 v{V_MC}, s{S_SCALE}, v{V_MX0}", rd=[V_MX0], wr=[V_MC]))

        def exps(hh, before):
            vs = [V_SUM0, V_SUM1][hh]
            A0, A1 = V_MX0, V_MX1
            pend = []
            for pr in range(32):
                a = T(4 * hh) + 2 * pr
                b = a + 1
                put([valu(f"v_fma_f32 v{a}, v{a}, s{S_SCALE}, -v{V_MC}", rd=[a, V_MC], wr=[a]),
                     valu(f"v_fma_f32 v{b}, v{b}, s{S_SCALE}, -v{V_MC}", rd=[b, V_MC], wr=[b])], before=before,
                    alt=[valu(f"v_pk_fma_f32 {vr(a, 2)}, {vr(a, 2)}, s[{S_SCALE}:{S_SCALE + 1}], {vr(V_MC, 2)} op_sel_hi:[1,0,0] neg_lo:[0,0,1] neg_hi:[0,0,1]",
                              rd=[a, b, V_MC], wr=[a, b])])
                put(trans(f"v_exp_f32 v{a}, v{a}", rd=[a], wr=[a]), before=before)
                put(trans(f"v_exp_f32 v{b}, v{b}", rd=[b], wr=[b]), before=before)
                for x, al in pend:
                    put(x, before=before, alt=al)
                if pr == 0:
                    pend = [([valu(f"v_mov_b32 v{A0}, v{a}", rd=[a], wr=[A0]), valu(f"v_mov_b32 v{A1}, v{b}", rd=[b], wr=[A1])], None)]
                else:
                    pend = [([valu(f"v_add_f32 v{A0}, v{A0}, v{a}", rd=[A0, a], wr=[A0]),
                              valu(f"v_add_f32 v{A1}, v{A1}, v{b}", rd=[A1, b], wr=[A1])],
                             [valu(f"v_pk_add_f32 {vr(A0, 2)}, {vr(A0, 2)}, {vr(a, 2)}", rd=[A0, A1, a, b], wr=[A0, A1])])]
                pend.append((cvt(T(8) + pr, a, b), None))
            for x, al in pend:
                put(x, before=before, alt=al)
            put(valu(f"v_add_f32 v{vs}, v{A0}, v{A1}", rd=[A0, A1], wr=[vs]))
            put(valu(f"v_mov_b32 v{V_TMP0}, v{vs}", rd=[vs], wr=[V_TMP0]))
            put(I(f"v_permlane32_swap_b32 v{vs}, v{V_TMP0}", "perm", rd=[vs, V_TMP0], wr=[vs, V_TMP0]))
            put(valu(f"v_add_f32 v{vs}, v{vs}, v{V_TMP0}", rd=[vs, V_TMP0], wr=[vs]))
            put(trans(f"v_rcp_f32 v{vs}, v{vs}", rd=[vs], wr=[vs]))

        def norm(hh):
            ri = [V_SUM0, V_SUM1][hh]
            dst = [T(8), T(4)][hh]
            for s in range(8):
                dt = s >> 1
                before = mk["own0use0"] if hh == 0 else min(mk[f"own1use{s}"], mk["PVend13"] + o["n1_start"] + o["n1_step"] * s)
                if hh == 0:
                    before = min(before, mk["PVend03"] + o["n1_start"] + o["n1_step"] * s)
                for p in range(4):
                    a = T(4 * hh) + 8 * s + 2 * p
                    put([valu(f"v_mul_f32 v{a}, v{a}, v{ri}", rd=[a, ri], wr=[a]),
                         valu(f"v_mul_f32 v{a + 1}, v{a + 1}, v{ri}", rd=[a + 1, ri], wr=[a + 1])], after=mk[f"PVend{hh}{dt}"], before=before,
                        alt=[valu(f"v_pk_mul_f32 {vr(a, 2)}, {vr(a, 2)}, {vr(ri, 2)} op_sel_hi:[1,0]", rd=[a, a + 1, ri], wr=[a, a + 1])])
                for p in range(4):
                    a = T(4 * hh) + 8 * s + 2 * p
                    put(cvt(dst + 4 * s + p, a, a + 1), after=mk[f"PVend{hh}3"], before=before)
                st = [salu(f"s_add_u32 s{S_T0}, s{S_OST}, {hh * 32768 + s * 4096}"), store4(dst + 4 * s, S_T0, o["ost_mod"], f"O{hh}")]
                m = mk[f"PVend{hh}3"] + o["pace"][hh][0] + o["pace"][hh][1] * s
                assert m >= before
                A.setdefault(m, []).extend(st)

        def flag(e, tag, at):
            A.setdefault(at, []).extend([I("", "stamp", tag=f"pre{e}"), I("", "waitvm", tag=tag), I("", "stamp", tag=f"fl{e}"),
                 salu(f"s_add_u32 s{S_T1}, s{S_TAG}, {e}"), valu(f"v_mov_b32 v{V_FV}, s{S_T1}", wr=[V_FV]), salu("s_mov_b64 exec, 1")] +
                ([salu(f"s_add_u32 s{S_T1}, s{S_FLAGA}, {WS_FLAGS2}"),
                  I(f"buffer_store_dword v{V_FV}, v{V_ZERO}, {srd(SRD_WS)}, s{S_T1} offen", "vst", rd=[V_FV, V_ZERO])] if e < 3 else []) +
                [I(f"buffer_store_dword v{V_FV}, v{V_ZERO}, {srd(SRD_WS)}, s{S_FLAGA} offen sc1", "vst", rd=[V_FV, V_ZERO]),
                 salu("s_mov_b64 exec, -1")])

        tagchk = F.pop()
        cvtq(0)
        maxes(0)
        exps(0, mk["st_PV0a"])
        F.append(tagchk[:1] + (None, mk["PVend03"]) + tagchk[3:])
        norm(0)
        cvtq(1)
        maxes(1)
        exps(1, mk["st_PV1a"])
        norm(1)
        flag(1, "O0", mk["PVend03"] + o["e1_at"])
        flag(2, "O1", mk["PVend13"] + o["e2_at"])
        for qd in range(4):
            d = T(6) + 4 * qd
            for t in range(2):
                for p in range(2):
                    a = T(10 + t) + 4 * qd + 2 * p
                    put(cvt(d + 2 * t + p, a, a + 1), after=mk[f"L8end1{t}"], before=mk["L8end11"] + 13)
            A.setdefault(mk["L8end11"] + o["pace"][2][0] + o["pace"][2][1] * qd, []).extend(
                [salu(f"s_add_u32 s{S_T0}, s{S_L8B}, {qd << 16}"), store4(d, S_T0, " sc1", "L8")])
        p0 = mk["L8end11"]
        flag(3, "L8", p0 + o["e3_at"])
        put(valu(f"v_mbcnt_lo_u32_b32 v{V_TMP0}, -1, 0", wr=[V_TMP0]), after=p0 + o["own_at"])
        put(valu(f"v_and_b32 v{V_TMP0}, 3, v{V_TMP0}", rd=[V_TMP0], wr=[V_TMP0]))
        put(valu(f"v_lshlrev_b32 v{V_TMP0}, 11, v{V_TMP0}", rd=[V_TMP0], wr=[V_TMP0]))
        put(valu(f"v_xor_b32 v{V_TMP0}, s{S_FLAGA}, v{V_TMP0}", rd=[V_TMP0], wr=[V_TMP0]))
        put(I(f"buffer_load_dword v{V_TMP1}, v{V_TMP0}, {srd(SRD_WS)}, 0 offen offset:4 sc1", "vld", rd=[V_TMP0], wr=[V_TMP1]))
        put([salu(f"s_add_u32 s{S_T1}, s{S_TAG}, 1"), valu(f"v_subrev_u32 v{V_TMP1}, s{S_T1}, v{V_TMP1}", rd=[V_TMP1], wr=[V_TMP1]),
             valu(f"v_cmp_lt_u32 vcc, 6, v{V_TMP1}", rd=[V_TMP1]), salu("s_nop 0"), I("s_cbranch_vccnz L_ownspin", "br"), label("L_ownok"),
             salu(f"s_lshl_b32 s{S_DEC}, s{S_TAG}, 16"), salu(f"s_sub_u32 s{S_DEC}, 0, s{S_DEC}")],
            after=p0 + o["own_at"] + 30)
        for t in range(3):
            d = T(10) + 8 * t
            for p in range(8):
                put(cvt(d + p, T(t) + 2 * p, T(t) + 2 * p + 1), after=mk[f"fin{t}"])
                put(valu(f"v_pk_add_u16 v{d + p}, s{S_TAG}, v{d + p}", rd=[d + p], wr=[d + p]))
                if p == 0:
                    put([salu(f"s_xor_b32 s{S_T2}, s{S_O}, {t ^ 3}"), salu(f"s_lshl_b32 s{S_T2}, s{S_T2}, 17"),
                         salu(f"s_add_u32 s{S_T2}, s{S_T2}, s{S_PARTB}")])
                if p % 4 == 3:
                    put([salu(f"s_add_u32 s{S_T0}, s{S_T2}, {t * 8192 + (p >> 2) * 4096}"), store4(d + p - 3, S_T0, o["pst_mod"])])
        self.F = F

    def compute_stream(self, S):
        o, ms = self.o, self.ms
        la, n = o["la"], len(self.ms)
        loads_at = {}
        seen = set()
        for m, x in enumerate(ms):
            for ld in [x.b, x.a] + x.extra:
                if isinstance(ld, Load) and id(ld) not in seen:
                    seen.add(id(ld))
                    loads_at.setdefault(max(m - la, -1), []).append((ld, x.stage))
        first_pos = {}
        for pos in sorted(loads_at):
            for ld, st in loads_at[pos]:
                first_pos.setdefault(st, pos)
        flag_at = {}
        for st, pos in first_pos.items():
            if self.stages[st]["new"]:
                flag_at.setdefault(max(pos - 3, -1), []).append(st)
        ai = bi = pi = 0
        bases, checked, have_flag = {}, set(), set()
        self.spins = []
        F, fi = self.F, 0
        stage_first = {}
        for m, x in enumerate(ms):
            stage_first.setdefault(x.stage, m)
        stamp_at = {}
        if o["stamps"]:
            for st, m0 in stage_first.items():
                if o.get("only") is None or self.stages[st]["name"] in o["only"]:
                    stamp_at[m0] = self.stages[st]["name"]

        def do_loads(pos):
            nonlocal ai, bi, pi
            c = 0
            for st in flag_at.get(pos, []):
                S.emit(I(f"ds_read_b32 v{V_FLAG}, v{V_FA} offset:{LDS_READY + 32 * st}", "ldsr", rd=[V_FA], wr=[V_FLAG]))
                have_flag.add(st)
                c += 1
            for ld, st in loads_at.get(pos, []):
                if st not in checked:
                    checked.add(st)
                    if self.stages[st]["new"] and not o.get("noready"):
                        assert st in have_flag
                        S.emit(valu(f"v_cmp_ne_u32 vcc, 1, v{V_FLAG}", rd=[V_FLAG]))
                        S.emit(salu("s_nop 0"))
                        S.emit(I(f"s_cbranch_vccnz L_spin{st}", "br"))
                        S.emit(label(f"L_back{st}"))
                        self.spins.append(st)
                        c += 3
                g = ld.group
                key = (g.name, ld.pat)
                if key not in bases:
                    for k2 in [k2 for k2 in bases if self.G[k2[0]].last < st]:
                        del bases[k2]
                    r = [V_POOL + (pi + q) % NPOOL for q in range(NPOOL) if V_POOL + (pi + q) % NPOOL not in bases.values()][0]
                    pi = r - V_POOL + 1
                    bases[key] = r
                    S.emit(valu(f"v_add_u32 v{r}, {g.addr}, v{ld.pat}", rd=[ld.pat], wr=[r]))
                    c += 1
                breg = bases[key]
                if ld.ring == "A":
                    ld.reg = ARING + 4 * (ai % NA)
                    ai += 1
                elif ld.ring == "B":
                    ld.reg = BRING + 4 * (bi % NB)
                    bi += 1
                ld.issued = True
                if len(ld.offs) == 2:
                    for q, off in enumerate(ld.offs):
                        S.emit(I(f"ds_read_b64_tr_b16 {vr(ld.reg + 2 * q, 2)}, v{breg} offset:{off}", "ldsr", rd=[breg], wr=rng(ld.reg + 2 * q, 2)))
                        c += 1
                else:
                    S.emit(I(f"ds_read_b128 {vr(ld.reg, 4)}, v{breg} offset:{ld.offs[0]}", "ldsr", rd=[breg], wr=rng(ld.reg, 4)))
                    c += 1
            return c

        def emit_item(k, exposed=False):
            c = 0
            for x in (F[k][3] if exposed and F[k][3] else F[k][0]):
                if x.kind == "stamp":
                    if o["stamps"] and o.get("fstamps"):
                        self.stamp(S, x.tag)
                    continue
                S.emit(x)
                c += x.cost
            return c

        def forced(m):
            last = -1
            for k in range(fi, len(F)):
                if F[k][2] is not None and F[k][2] <= m:
                    last = k
            return last

        deferred, defer_until, defer_stage = [], None, None
        do_loads(-1)
        for m, x in enumerate(ms):
            lastforce = forced(m)
            while fi <= lastforce:
                assert F[fi][1] is None or F[fi][1] < m, (F[fi][0][0].text, F[fi][1], m)
                if defer_until == m and lastforce - fi < o["late_lead"]:
                    for pos in deferred:
                        do_loads(pos)
                    deferred, defer_until = [], None
                emit_item(fi, True)
                fi += 1
            if defer_until == m:
                for pos in deferred:
                    do_loads(pos)
                deferred, defer_until = [], None
            if o.get("mrange") and o["mrange"][0] <= m < o["mrange"][1] and (m - o["mrange"][0]) % o["mrange"][2] == 0:
                self.stamp(S, f"m{m}")
            if m in stamp_at:
                self.stamp(S, stamp_at[m])
            a = x.a.reg if isinstance(x.a, Load) else x.a
            b = x.b.reg if isinstance(x.b, Load) else x.b
            if x.extra:
                pass
            if o["pairwait"] and m % 2 == 0 and m + 1 < n:
                extra = rng(a, 4) + rng(b, 4)
                for ld in (ms[m + 1].a, ms[m + 1].b):
                    if isinstance(ld, Load) and getattr(ld, "issued", False):
                        extra += rng(ld.reg, 4)
                S.wait(lg=S._need(S.lg, set(extra)))
            S.emit(mfma(x.d, a, b, x.c0))
            c = 1
            if (m + 1 == n or ms[m + 1].stage != x.stage) and x.stage < self.max_free:
                S.emit(I(f"global_load_lds_dword v{V_ZERO}, s[{S_TAB}:{S_TAB + 1}] offset:{4 * (63 - x.stage)}", "vld", rd=[V_ZERO]))
                c += 1
            if o["late"] and defer_until is None:
                for st in flag_at.get(m, []):
                    m0 = stage_first[st]
                    if forced(m0) - fi + 1 > 3 * (m0 - m) + 24:
                        defer_until, defer_stage = m0, st
            if defer_until is not None:
                key = ("d", m)
                loads_at[key] = [e for e in loads_at.get(m, []) if e[1] >= defer_stage]
                loads_at[m] = [e for e in loads_at.get(m, []) if e[1] < defer_stage]
                if m in flag_at:
                    flag_at[key] = flag_at.pop(m)
                deferred.append(key)
            c += do_loads(m)
            for x in self.A.get(m, []):
                if x.kind == "stamp":
                    if o["stamps"] and o.get("fstamps"):
                        self.stamp(S, x.tag)
                    continue
                S.emit(x)
                c += x.cost
            while fi < len(F) and c < o["budget"]:
                after = F[fi][1]
                if after is not None and after + 2 > m:
                    break
                c += emit_item(fi)
                fi += 1
        if o["stamps"]:
            self.stamp(S, "end")
        while fi < len(F):
            emit_item(fi, True)
            fi += 1

    def stamp(self, S, name):
        if self.o.get("tiny"):
            return
        k = len(self.cnames)
        self.cnames.append(name)
        D = 5
        if k >= D:
            S.raw(f"v_writelane_b32 v{V_ST}, s{S_STAMP + 2 * ((k - D) % 6)}, {k - D}")
        S.raw(f"{self.tm} s[{S_STAMP + 2 * (k % 6)}:{S_STAMP + 2 * (k % 6) + 1}]")
        if name == "polled":
            S.raw("s_waitcnt lgkmcnt(0)")
            for q in range(max(0, k - D + 1), k + 1):
                S.raw(f"v_writelane_b32 v{V_ST}, s{S_STAMP + 2 * (q % 6)}, {q}")

    def lstamp(self, name):
        if self.o.get("tiny"):
            return ""
        k = len(self.lnames)
        self.lnames.append(name)
        return f"{self.tm} s[{S_STAMP}:{S_STAMP + 1}]\ns_waitcnt lgkmcnt(0)\nv_writelane_b32 v{240 + k // 64}, s{S_STAMP}, {k % 64}\n"

    def stamp_out(self, regs, idx):
        t = f"s_waitcnt vmcnt(0) lgkmcnt(0)\n{self.tm} s[{S_STAMP}:{S_STAMP + 1}]\ns_getreg_b32 s{S_STAMP + 4}, hwreg(HW_REG_XCC_ID)\ns_waitcnt lgkmcnt(0)\n"
        r = regs[-1]
        t += f"v_writelane_b32 v{regs[idx // 64]}, s{S_STAMP}, {idx % 64}\nv_writelane_b32 v{r}, s76, 59\nv_writelane_b32 v{r}, s72, 60\nv_writelane_b32 v{r}, s{S_STAMP}, 61\nv_writelane_b32 v{r}, s{S_STAMP + 4}, 62\n"
        t += f"s_lshl_b32 s{S_T0}, s2, 3\ns_add_u32 s{S_T0}, s{S_T0}, s{S_WAVE}\ns_lshl_b32 s{S_T0}, s{S_T0}, 9\ns_add_u32 s{S_T0}, s{S_T0}, {WS_STAMP}\n"
        t += "v_mbcnt_lo_u32_b32 v1, -1, 0\nv_mbcnt_hi_u32_b32 v1, -1, v1\nv_lshlrev_b32 v1, 2, v1\n"
        for k, r in enumerate(regs):
            t += f"buffer_store_dword v{r}, v1, {srd(SRD_WS)}, s{S_T0} offen offset:{256 * k + (256 if len(regs) == 1 else 0)}\n"
        return t

    def spin_guard(self, back):
        return (f"s_add_u32 s{S_SPIN}, s{S_SPIN}, 1\ns_cmp_gt_u32 s{S_SPIN}, {self.o['spin_limit']}\n"
                f"s_cbranch_scc1 {back}\n")

    SIZES = {SRD_X: 1179648, SRD_K: 8388608, SRD_V: 8388608, SRD_WQ: 4718592, SRD_WO: 4718592,
             SRD_WS: 268435456, SRD_OUT: 2359296, SRD_DBG: 256}
    LAND = {SRD_K: 60, SRD_V: 62, SRD_OUT: 68, SRD_DBG: 70}

    def srd_build(self, regs):
        t = ""
        for r in regs:
            if r in self.LAND:
                t += f"s_mov_b64 s[{r}:{r + 1}], s[{self.LAND[r]}:{self.LAND[r] + 1}]\n"
            t += f"s_mov_b32 s{r + 2}, {self.SIZES[r]}\ns_mov_b32 s{r + 3}, 0x20000\n"
        return t

    def ids(self):
        return f"""s_bfe_u32 s{S_P}, s2, 0x10002
s_lshl_b32 s{S_COMP}, s{S_P}, 3
s_add_u32 s{S_COMP}, s{S_COMP}, s{S_B}
s_lshl_b32 s{S_CID}, s{S_COMP}, 2
s_add_u32 s{S_CID}, s{S_CID}, s{S_O}
s_lshl_b32 s{S_CID}, s{S_CID}, 2
s_add_u32 s{S_CID}, s{S_CID}, s{S_J}
s_mov_b32 s{S_SPIN}, 0
"""

    def prologue(self):
        st = self.o["stamps"]
        t = "s_memrealtime s[72:73]\n" if st else ""
        t += f"""s_cmp_ge_u32 s2, 256
s_cbranch_scc1 L_end
s_and_b32 s{S_T0}, s2, 4
s_mul_i32 s{S_T0}, s{S_T0}, 10
s_add_u32 s{S_T2}, s0, s{S_T0}
s_addc_u32 s{S_T3}, s1, 0
s_load_dwordx2 s[{SRD_X}:{SRD_X + 1}], s[{S_T2}:{S_T3}], 0
s_load_dwordx2 s[{SRD_WQ}:{SRD_WQ + 1}], s[{S_T2}:{S_T3}], 24
s_load_dwordx4 s[60:63], s[{S_T2}:{S_T3}], 8
s_load_dwordx2 s[{SRD_WO}:{SRD_WO + 1}], s[{S_T2}:{S_T3}], 32
s_load_dwordx4 s[68:71], s[0:1], 80
s_load_dwordx2 s[{SRD_WS}:{SRD_WS + 1}], s[0:1], 96
v_readfirstlane_b32 s{S_WAVE}, v0
v_and_b32 v0, 63, v0
s_lshr_b32 s{S_B}, s2, 5
s_lshr_b32 s{S_WAVE}, s{S_WAVE}, 6
s_and_b32 s{S_W}, s{S_WAVE}, 3
s_cmp_lt_u32 s{S_WAVE}, 4
s_cbranch_scc1 L_cstub
"""
        return t

    def cstub(self):
        st = self.o["stamps"]
        return f"""L_cstub:
s_getpc_b64 s[{S_TAB}:{S_TAB + 1}]
L_pc2:
; clear the hand-off words in LDS
v_mov_b32 v16, 0
v_mov_b32 v17, 0
v_mov_b32 v18, 0
v_mov_b32 v19, 0
s_lshl_b32 s{S_T0}, s{S_W}, 10
v_lshl_add_u32 v{V_LIN}, v0, 4, s{S_T0}
ds_write_b128 v{V_LIN}, v[16:19]
s_cmp_lg_u32 s{S_WAVE}, 0
s_cbranch_scc1 L_notouch
s_bfe_u32 s{S_T0}, s2, 0x30003
s_mul_i32 s{S_T0}, s{S_T0}, (L_codeend-L_pc2+1023)/1024
v_add_u32 v1, s{S_T0}, v0
v_min_u32 v1, (L_codeend-L_pc2-4)/128, v1
v_lshlrev_b32 v1, 7, v1
global_load_dword v{V_FV}, v1, s[{S_TAB}:{S_TAB + 1}]
L_notouch:
s_add_u32 s{S_TAB}, s{S_TAB}, L_ones-L_pc2
s_addc_u32 s{S_TAB + 1}, s{S_TAB + 1}, 0
s_waitcnt lgkmcnt(0)
{"s_memrealtime s[76:77]" if st else ""}
s_barrier
s_branch L_compute
"""

    def compute_prologue(self):
        t = f"""s_setprio {self.o['cprio']}
s_and_b32 s{S_O}, s2, 3
s_bfe_u32 s{S_J}, s2, 0x20003
v_mov_b32 v{V_ZERO}, 0
v_and_b32 v1, 31, v0
v_lshrrev_b32 v2, 5, v0
v_bfe_u32 v3, v0, 2, 2
v_and_b32 v4, 1, v0
v_lshlrev_b32 v4, 1, v4
v_bfe_u32 v5, v0, 1, 1
v_or_b32 v4, v4, v5
v_bfe_u32 v5, v0, 4, 1
v_lshl_add_u32 v4, v5, 2, v4
v_lshlrev_b32 v4, 3, v4
v_lshl_add_u32 v4, v3, 6, v4
v_lshl_add_u32 v{V_TR}, v2, 11, v4
v_lshl_add_u32 v{V_TR8}, v2, 10, v4
v_lshrrev_b32 v6, 3, v1
v_lshlrev_b32 v6, 10, v6
v_and_b32 v7, 7, v1
v_lshl_add_u32 v6, v7, 6, v6
v_xor_b32 v7, v3, v2
v_lshl_add_u32 v6, v7, 4, v6
s_lshl_b32 s{S_T0}, s{S_W}, 12
v_add_u32 v{V_XB0}, s{S_T0}, v6
v_xor_b32 v{V_XB1}, 32, v{V_XB0}
v_and_b32 v6, 7, v0
v_lshlrev_b32 v{V_FA}, 2, v6
s_mul_i32 s{S_T0}, s{S_W}, 516
s_add_u32 m0, s{S_T0}, {LDS_DONE}
v_and_b32 v5, 19, v1
v_bfe_u32 v6, v1, 2, 1
v_lshl_add_u32 v5, v6, 3, v5
v_bfe_u32 v6, v1, 3, 1
v_lshl_add_u32 v5, v6, 2, v5
; K pattern
v_lshrrev_b32 v6, 2, v5
v_lshlrev_b32 v7, 10, v6
v_and_b32 v8, 3, v5
v_lshl_add_u32 v7, v8, 6, v7
v_and_b32 v6, 3, v6
v_xor_b32 v6, v6, v2
v_lshl_add_u32 v{V_KB0}, v6, 4, v7
v_xor_b32 v{V_KB1}, 32, v{V_KB0}
v_mul_u32_u24 v6, {4 * 2304}, v2
v_lshl_add_u32 v{V_OUTA}, v5, 1, v6
s_mov_b32 s{S_SCALE}, 0x3e0293ee
"""
        t += self.ids() + self.srd_build([SRD_WS, SRD_OUT, SRD_DBG])
        t += f"""s_mul_i32 s{S_OST}, s{S_CID}, {self.o['ostride']}
s_add_u32 s{S_OST}, s{S_OST}, {WS_O}
s_lshl_b32 s{S_INBOX}, s{S_CID}, 15
s_add_u32 s{S_INBOX}, s{S_INBOX}, {WS_PART}
s_andn2_b32 s{S_PARTB}, s{S_CID}, 12
s_lshl_b32 s{S_PARTB}, s{S_PARTB}, 15
s_add_u32 s{S_PARTB}, s{S_PARTB}, {WS_PART}
s_lshl_b32 s{S_FLAGA}, s{S_CID}, 2
s_add_u32 s{S_FLAGA}, s{S_FLAGA}, s{S_W}
s_lshl_b32 s{S_FLAGA}, s{S_FLAGA}, 7
s_lshl_b32 s{S_L8B}, s{S_COMP}, 4
s_add_u32 s{S_L8B}, s{S_L8B}, s{S_W}
s_lshl_b32 s{S_L8B}, s{S_L8B}, 4
s_and_b32 s{S_T0}, s{S_CID}, 15
s_add_u32 s{S_L8B}, s{S_L8B}, s{S_T0}
s_sub_u32 s{S_L8B}, s{S_L8B}, s{S_W}
s_lshl_b32 s{S_L8B}, s{S_L8B}, 10
s_add_u32 s{S_L8B}, s{S_L8B}, {WS_L8}
s_lshl_b32 s{S_OUTB}, s{S_B}, 2
s_add_u32 s{S_OUTB}, s{S_OUTB}, s{S_W}
s_mul_i32 s{S_OUTB}, s{S_OUTB}, {32 * 2304}
s_mul_i32 s{S_T0}, s{S_P}, 1152
s_add_u32 s{S_OUTB}, s{S_OUTB}, s{S_T0}
s_lshl_b32 s{S_T0}, s{S_J}, 8
s_add_u32 s{S_OUTB}, s{S_OUTB}, s{S_T0}
s_lshl_b32 s{S_T0}, s{S_O}, 6
s_add_u32 s{S_OUTB}, s{S_OUTB}, s{S_T0}
s_lshl_b32 s{S_T4}, s{S_COMP}, 2
{self.pretouch()}{self.warm()}; leader wave: fetch the hand-off words an earlier launch left (the tag is chosen from them a little later)
s_and_b32 s{S_LEAD}, s{S_CID}, 15
s_or_b32 s{S_LEAD}, s{S_LEAD}, s{S_WAVE}
s_cmp_lg_u32 s{S_LEAD}, 0
s_cbranch_scc1 L_noscan
v_lshlrev_b32 v1, 7, v0
s_lshl_b32 s{S_T0}, s{S_COMP}, 13
buffer_load_dwordx2 v[{V_MX0}:{V_MX1}], v1, {srd(SRD_WS)}, s{S_T0} offen sc1
s_add_u32 s{S_T0}, s{S_T0}, {WS_FLAGS2}
buffer_load_dword v{V_MC}, v1, {srd(SRD_WS)}, s{S_T0} offen sc1
L_noscan:
"""
        return t

    def pretouch(self):
        if not self.o.get("pre"):
            return ""
        d = V_TMP1
        return f"""s_cmp_lg_u32 s{S_WAVE}, 1
s_cbranch_scc1 L_pt1
v_and_b32 v1, 3, v0
v_lshlrev_b32 v2, 17, v1
v_add_u32 v2, s{S_PARTB}, v2
v_lshlrev_b32 v3, 16, v1
v_add_u32 v3, s{S_L8B}, v3
v_mov_b32 v4, s{S_OST}
v_cmp_gt_u32 vcc, 4, v0
s_nop 1
v_cndmask_b32 v4, v4, v2, vcc
v_lshrrev_b32 v5, 2, v0
v_cmp_eq_u32 vcc, 1, v5
s_nop 1
v_cndmask_b32 v4, v4, v3, vcc
s_mov_b64 exec, 0x1ff
buffer_load_dword v{d}, v4, {srd(SRD_WS)}, 0 offen sc1 nt
s_mov_b64 exec, 1
buffer_load_dword v{d}, v{V_ZERO}, {srd(SRD_OUT)}, s{S_OUTB} offen nt
buffer_load_dword v{d}, v{V_ZERO}, {srd(SRD_WS)}, s{S_FLAGA} offen sc1 nt
s_mov_b64 exec, -1
L_pt1:
"""

    def warm(self):
        return ""

    def compute_tail(self, S):
        o = self.o
        if o["stamps"]:
            self.stamp(S, "sent")
        NEW = T(0)
        OLD = rng(T(4), 24)
        X = ARING
        zst = len(self.stages) - 1
        S.emit(I("", "waitlg0"))
        S.emit(salu("s_nop 7"))
        phases = [(0, 8), (8, 14)]

        def loads(k0, k1):
            for k in range(k0, k1):
                S.raw(f"s_add_u32 s{S_T1}, s{S_INBOX}, {k * 4096}")
                S.raw(f"buffer_load_dwordx4 {vr(NEW + 4 * k, 4)}, v{V_LIN}, {srd(SRD_WS)}, s{S_T1} offen{o['pld_mod']}")

        def check(k0, k1, younger):
            for k in range(k0, k1):
                S.raw(f"s_waitcnt vmcnt({k1 - 1 - k + younger}) lgkmcnt(0)")
                for q in range(4):
                    S.raw(f"v_xor_b32 v{X + q}, v{NEW + 4 * k + q}, v{OLD[4 * k + q]}")
                if k == k0:
                    S.raw(f"v_min_u32 v{X + 4}, v{X}, v{X + 1}")
                else:
                    S.raw(f"v_min3_u32 v{X + 4}, v{X + 4}, v{X}, v{X + 1}")
                S.raw(f"v_min3_u32 v{X + 4}, v{X + 4}, v{X + 2}, v{X + 3}")
            S.raw(f"v_cmp_eq_u32 vcc, 0, v{X + 4}")

        def accumulate(k0, k1):
            for k in range(k0, k1):
                for q in range(4):
                    s = NEW + 4 * k + q
                    a = T(3) + 8 * (k & 1) + 2 * q
                    y = X + 6 + 2 * (q & 1)
                    S.raw(f"v_lshl_add_u32 v{y}, v{s}, 16, s{S_DEC}")
                    S.raw(f"v_and_b32 v{y + 1}, 0xffff0000, v{s}")
                    S.raw(f"v_pk_add_f32 {vr(a, 2)}, {vr(a, 2)}, {vr(y, 2)}")

        def retry(name, again):
            S.raw("s_nop 1")
            S.raw(f"s_cbranch_vccz {name}_ok")
            S.raw(f"s_bitcmp1_b32 s{S_GOT}, 31")
            S.raw(f"s_cbranch_scc1 {name}_ok")
            S.raw(f"s_add_u32 s{S_GOT}, s{S_GOT}, 1")
            S.raw(f"s_cmp_lt_u32 s{S_GOT}, 48")
            S.raw(f"s_cbranch_scc1 {again}")
            S.raw(f"s_call_b64 s[{S_LINK}:{S_LINK + 1}], L_fslow")
            S.raw(f"s_branch {again}")

        loads(0, 6)
        S.raw(f"s_mov_b32 s{S_GOT}, 0")
        S.out.append("L_zspin:")
        S.raw(f"ds_read_b32 v{V_FLAG}, v{V_FA} offset:{LDS_READY + 32 * zst}")
        for q, s in enumerate("ab"):
            S.raw(f"v_add_u32 v{V_POOL + q}, {self.G['Z' + s].addr}, v{V_LIN}")
        S.raw("s_waitcnt lgkmcnt(0)")
        S.raw(f"v_cmp_ne_u32 vcc, 1, v{V_FLAG}")
        S.raw("s_nop 1")
        S.raw("s_cbranch_vccz L_zok")
        S.out.append(self.spin_guard("L_zok") + "s_branch L_zspin")
        S.out.append("L_zok:")
        for k in range(6):
            S.raw(f"ds_read_b128 {vr(OLD[4 * k], 4)}, v{V_POOL + k // 4} offset:{(k % 4) * 4096}")
        check(0, 4, 2)
        S.raw(f"s_add_u32 s{S_T1}, s{S_TAG}, 4")
        S.raw(f"v_mov_b32 v{V_FV}, s{S_T1}")
        S.raw("s_mov_b64 exec, 1")
        S.raw(f"buffer_store_dword v{V_FV}, v{V_ZERO}, {srd(SRD_WS)}, s{S_FLAGA} offen sc1")
        S.raw("s_mov_b64 exec, -1")
        S.raw("s_cbranch_vccz L_fa_ok")
        S.out.append("L_fa:")
        loads(0, 4)
        check(0, 4, 0)
        retry("L_fa", "L_fa")
        S.out.append("L_fa_ok:")
        accumulate(0, 4)
        check(4, 6, 1)
        S.raw("s_nop 0")
        S.raw("s_cbranch_vccz L_fb_ok")
        S.out.append("L_fb:")
        loads(4, 6)
        check(4, 6, 0)
        retry("L_fb", "L_fb")
        S.out.append("L_fb_ok:")
        if o["stamps"]:
            self.stamp(S, "polled")
        accumulate(4, 6)
        for p in range(8):
            a = T(3) + 2 * p
            d = T(6) + p
            S.raw(f"s_add_u32 s{S_T0}, s{S_OUTB}, {(8 * (p >> 1) + 2 * (p & 1)) * 2304}")
            S.raw(f"v_cvt_pk_bf16_f32 v{d}, v{a}, v{a + 1}")
            S.raw(f"buffer_store_short v{d}, v{V_OUTA}, {srd(SRD_OUT)}, s{S_T0} offen{o['out_mod']}")
            S.raw(f"buffer_store_short_d16_hi v{d}, v{V_OUTA}, {srd(SRD_OUT)}, s{S_T0} offen offset:2304{o['out_mod']}")

    def loader(self):
        o = self.o
        VX, VW, VV, VK, VU0, VU1, VE, VF, VL, VDA, VTG, VPOLL, VPOLL2, VT, VZ, VRD, VONE = range(10, 27)
        VONE = 28
        cm = o["common"]
        nrot = 9 - cm
        first = f"""; x: rr*1152 + kh*64 + (c^phi)*16 + l*9216
v_bfe_u32 v5, v0, 2, 3
v_mul_u32_u24 v6, 1152, v5
v_lshrrev_b32 v3, 5, v0
v_lshl_add_u32 v6, v3, 6, v6
v_lshrrev_b32 v7, 2, v5
s_lshl_b32 s{S_T0}, s{S_W}, 1
v_xor_b32 v7, s{S_T0}, v7
v_xor_b32 v7, v7, v0
v_and_b32 v7, 3, v7
v_lshl_add_u32 v6, v7, 4, v6
s_mul_i32 s{S_T0}, s{S_W}, 9216
v_add_u32 v{VX}, s{S_T0}, v6
s_lshl_b32 s{S_L1024}, s{S_W}, 10
s_mul_i32 s{S_XB}, s{S_B}, 147456
s_mov_b32 s{SRD_X + 2}, {self.SIZES[SRD_X]}
s_mov_b32 s{SRD_X + 3}, 0x20000
{"s_memrealtime s[76:77]" if o["stamps"] else ""}
s_waitcnt lgkmcnt(0)
"""
        second = f"""; wq: r*8192 + t*64 + c*16 + l*32768
v_bfe_u32 v1, v0, 2, 2
v_and_b32 v2, 3, v0
v_lshlrev_b32 v4, 2, v0
v_and_b32 v4, 0xc0, v4
v_lshl_add_u32 v4, v2, 4, v4
s_lshl_b32 s{S_T0}, s{S_W}, 15
v_lshl_add_u32 v{VW}, v1, 13, v4
v_add_u32 v{VW}, s{S_T0}, v{VW}
s_and_b32 s{S_O}, s2, 3
s_bfe_u32 s{S_J}, s2, 0x20003
s_lshl_b32 s{S_T0}, s{S_O}, 3
s_lshl_b32 s{S_T1}, s{S_J}, 1
s_add_u32 s{S_HD}, s{S_T0}, s{S_T1}
s_lshl_b32 s{S_WQB}, s{S_HD}, 8
s_mov_b32 s{SRD_WQ + 2}, {self.SIZES[SRD_WQ]}
s_mov_b32 s{SRD_WQ + 3}, 0x20000
"""
        third = f"""s_getpc_b64 s[{S_TAB}:{S_TAB + 1}]
L_pc1:
s_add_u32 s{S_TAB}, s{S_TAB}, L_ones-L_pc1
s_addc_u32 s{S_TAB + 1}, s{S_TAB + 1}, 0
v_mov_b32 v{VZ}, 0
s_lshl_b32 s{S_RDY}, s{S_W}, 3
s_lshl_b32 s{S_ROT}, s{S_J}, 1
s_add_u32 s{S_ROT}, s{S_ROT}, s{S_B}
s_sub_u32 s{S_T0}, s{S_ROT}, {nrot}
s_cmp_ge_u32 s{S_ROT}, {nrot}
s_cselect_b32 s{S_ROT}, s{S_T0}, s{S_ROT}
s_barrier
"""
        assert nrot >= 7
        rest = self.ids() + self.srd_build([SRD_K, SRD_V, SRD_WO, SRD_WS, SRD_OUT, SRD_DBG]) + f"""; V: r*256 + t*64 + c*16 + l*1024
v_lshl_add_u32 v{VV}, v1, 8, v4
v_add_u32 v{VV}, s{S_L1024}, v{VV}
; K: same with c^l
s_lshl_b32 s{S_T0}, s{S_W}, 4
v_xor_b32 v{VK}, s{S_T0}, v{VV}
; wo: r*1152 + (t^3^o)*64 + c*16 + l*4608
v_mul_u32_u24 v6, 1152, v1
s_xor_b32 s{S_T1}, s{S_O}, 3
s_lshl_b32 s{S_T1}, s{S_T1}, 6
v_xor_b32 v7, s{S_T1}, v4
v_add_u32 v6, v6, v7
s_mul_i32 s{S_T0}, s{S_W}, 4608
v_add_u32 v{VU0}, s{S_T0}, v6
; 128-byte rows: (4*rg2+r)*1152 + t*64 + c*16 + l*9216
v_lshl_add_u32 v8, v3, 2, v1
v_mul_u32_u24 v6, 1152, v8
s_mul_i32 s{S_T0}, s{S_W}, 9216
v_add_u32 v6, s{S_T0}, v6
v_and_b32 v7, 0x7f, v7
v_add_u32 v{VF}, v6, v7
v_and_b32 v7, 0x7f, v4
v_add_u32 v{VE}, v6, v7
; poll address: lane r -> flag of producer (j+r)&3, wave l
v_add_u32 v6, s{S_J}, v0
v_and_b32 v6, 3, v6
s_andn2_b32 s{S_T0}, s{S_CID}, 3
v_add_u32 v6, s{S_T0}, v6
v_lshlrev_b32 v6, 2, v6
v_add_u32 v6, s{S_W}, v6
v_lshlrev_b32 v{VU1}, 7, v6
v_lshlrev_b32 v6, 4, v0
v_add_u32 v{VL}, s{S_L1024}, v6
v_mul_u32_u24 v{VDA}, 516, v2
s_lshl_b32 s{S_KVB}, s{S_B}, 5
s_add_u32 s{S_KVB}, s{S_KVB}, s{S_HD}
s_lshl_b32 s{S_KVB}, s{S_KVB}, 15
s_mul_i32 s{S_OWNB}, s{S_HD}, {128 * 1152}
s_mul_i32 s{S_WOB}, s{S_O}, {1024 * 1152}
s_lshl_b32 s{S_T0}, s{S_J}, 8
s_add_u32 s{S_WOB}, s{S_WOB}, s{S_T0}
s_mov_b32 s{S_TAG}, 0
s_mov_b32 s{S_NEED}, 1
s_mov_b32 s{S_PCNT}, 0
s_{o['varsel']}
v_mov_b32 v{VPOLL}, 0
v_mov_b32 v{VPOLL2}, 0
v_mov_b32 v{VRD}, s{S_RDY}
v_mov_b32 v{VONE}, 1
v_mov_b32 v{VONE + 1}, 1
"""
        t = first
        vm, known, gi = [], 0, -1
        pend_pub, tag_at, z_at = [], None, None
        slp = f"s_sleep {o['lsleep']}\n" if o["lsleep"] else ""
        curblk, seen_e, polling, quiet = None, 0, False, False
        zreg = {"Za": 32, "Zb": 48}

        def gettag():
            nonlocal tag_at
            if tag_at is None:
                return ""
            r = f"""s_waitcnt vmcnt({min(63, len(vm) - tag_at)})
v_readfirstlane_b32 s{S_TAG}, v{VTG}
s_nop 1
s_cmp_lg_u32 s{S_TAG}, 0
s_cbranch_scc1 L_ltagok
s_call_b64 s[{S_LINK}:{S_LINK + 1}], L_waittag
L_ltagok:
"""
            tag_at = None
            return r

        for pos, item in enumerate(self.items):
            name, _, var = item.partition("/")
            skip0 = f"s_cmp_lg_u32 s{S_VAR}, {int(var)}\ns_cbranch_scc1 L_skip{pos}\n" if var else ""
            skip1 = f"L_skip{pos}:\n" if var else ""
            if name == "@two":
                t += skip0 + f"""v_lshrrev_b32 v1, 1, v0
s_lshl_b32 s{S_T0}, s{S_W}, 5
v_add_u32 v1, s{S_T0}, v1
v_mul_u32_u24 v1, 1152, v1
v_and_b32 v8, 1, v0
v_lshl_add_u32 v1, v8, 7, v1
s_mul_i32 s{S_T0}, s{S_B}, {128 * 1152}
s_add_u32 s{S_T0}, s{S_T0}, s{S_WOB}
buffer_load_dword v{VT}, v1, {srd(SRD_WO)}, s{S_T0} offen{o['two_mod']}
v_and_b32 v1, 7, v0
s_lshl_b32 s{S_T0}, s{S_W}, 3
v_add_u32 v1, s{S_T0}, v1
v_mul_u32_u24 v1, 1152, v1
s_mul_i32 s{S_T0}, s{S_B}, {32 * 1152}
s_add_u32 s{S_T0}, s{S_T0}, s{S_OWNB}
s_add_u32 s{S_T0}, s{S_T0}, 1024
s_mov_b64 exec, 0xff
buffer_load_dword v{VT}, v1, {srd(SRD_WO)}, s{S_T0} offen{o['two_mod']}
s_mov_b64 exec, -1
""" + skip1
                continue
            if name == "@tag":
                t += f"s_lshl_b32 s{S_T0}, s{S_COMP}, 2\nbuffer_load_dword v{VTG}, v{VZ}, {srd(SRD_DBG)}, s{S_T0} offen sc1\n"
                vm.append("tag")
                tag_at = len(vm)
                continue
            if name == "@zflag":
                t += gettag() + f"""s_waitcnt vmcnt({min(63, len(vm) - z_at)})
s_add_u32 s{S_T1}, s{S_TAG}, 1
s_lshl_b32 s{S_T0}, s{S_CID}, 2
s_add_u32 s{S_T0}, s{S_T0}, s{S_W}
s_lshl_b32 s{S_T0}, s{S_T0}, 7
v_mov_b32 v4, s{S_T1}
s_mov_b64 exec, 1
buffer_store_dword v4, v{VZ}, {srd(SRD_WS)}, s{S_T0} offen offset:4 sc1
s_mov_b64 exec, -1
"""
                vm.append("zf")
                continue
            mode = ""
            if name[1] == ":":
                mode, name = name[0], name[2:]
            g = self.G[name]
            k, kw = g.kind, g.kw
            npc = 2 if name == "Zb" else 4
            t += f"; ---- {pos} {item} slot {g.slot} free_req {g.free_req} need {g.need}\n"
            if mode == "R":
                t += f"s_lshl_b32 s{S_T0}, s{S_CID}, 15\n"
                for u in range(npc):
                    d = zreg[name] + 4 * u
                    t += f"s_add_u32 s{S_SOFF}, s{S_T0}, {WS_PART + kw['sub'] * 16384 + u * 4096}\n"
                    t += f"buffer_load_dwordx4 v[{d}:{d + 3}], v{VL}, {srd(SRD_WS)}, s{S_SOFF} offen{o['pre_mod']}\n"
                    vm.append("z")
                z_at = len(vm)
                continue
            gi += 1
            t += skip0
            if g.free_req > known and not o.get('nofree'):
                off = LDS_DONE + 4 * (63 - (g.free_req - 1))
                if not var:
                    known = g.free_req
                ps = f"s_call_b64 s[{S_LINK}:{S_LINK + 1}], L_pollstep\n" if polling else slp
                t += f"L_fchk{pos}:\nds_read_b32 v4, v{VDA} offset:{off}\ns_waitcnt lgkmcnt(0)\nv_cmp_ne_u32 vcc, 1, v4\ns_nop 1\ns_cbranch_vccz L_fok{pos}\n"
                t += ps + self.spin_guard(f"L_fok{pos}") + f"s_branch L_fchk{pos}\nL_fok{pos}:\n"
            if mode == "D":
                if not quiet:
                    t += "s_waitcnt vmcnt(0)\n"
                    quiet = True
                t += f"v_add_u32 v5, {g.addr}, v{VL}\n"
                for u in range(npc):
                    d = zreg[name] + 4 * u
                    t += f"ds_write_b128 v5, v[{d}:{d + 3}] offset:{u * 4096}\n"
                if name == "Zb":
                    t += f"s_mov_b64 exec, 1\nds_write_b64 v{VRD}, v[{VONE}:{VONE + 1}] offset:{LDS_READY + 32 * g.need}\ns_mov_b64 exec, -1\n"
                continue
            if k == "o" and kw["h"] + 1 > seen_e:
                e = seen_e = kw["h"] + 1
                t += gettag() + f"""L_rw{pos}:
s_cmp_gt_u32 s{S_NEED}, {e}
s_cbranch_scc1 L_rok{pos}
s_call_b64 s[{S_LINK}:{S_LINK + 1}], L_pollstep
""" + self.spin_guard(f"L_rok{pos}") + f"s_branch L_rw{pos}\nL_rok{pos}:\n"
                polling = e == 1
            if k in ("x", "wq") and (kw["h"], kw["i"]) != curblk:
                curblk = (kw["h"], kw["i"])
                if kw["i"] >= cm:
                    t += f"s_add_u32 s{S_BLK}, s{S_ROT}, {cm}\ns_add_u32 s{S_ROT}, s{S_ROT}, 1\ns_cmp_eq_u32 s{S_ROT}, {nrot}\ns_cselect_b32 s{S_ROT}, 0, s{S_ROT}\n"
            gb = S_GB
            if k == "x":
                v, r, offs, mod = [VX] * 4, SRD_X, [u * 36864 for u in range(4)], o["x_mod"]
                if kw["i"] < cm:
                    gb, offs = S_XB, [q + kw["i"] * 128 for q in offs]
                else:
                    t += f"s_lshl_b32 s{S_GB}, s{S_BLK}, 7\ns_add_u32 s{S_GB}, s{S_GB}, s{S_XB}\n"
            elif k == "wq":
                v, r, mod = [VW] * 4, SRD_WQ, o["wq_mod"]
                offs = [u * 16 * 8192 + kw["h"] * 256 for u in range(4)]
                if kw["i"] < cm:
                    gb, offs = S_WQB, [q + (kw["i"] << 19) for q in offs]
                else:
                    t += f"s_lshl_b32 s{S_GB}, s{S_BLK}, 19\ns_add_u32 s{S_GB}, s{S_GB}, s{S_WQB}\n"
            elif k in ("k", "v"):
                gb = S_KVB
                v, r = ([VK] * 4, SRD_K) if k == "k" else ([VV] * 4, SRD_V)
                offs, mod = [kw["h"] * 32768 + kw["sub"] * 16384 + u * 4096 for u in range(4)], o["kv_mod"]
            elif k in ("wo", "fin"):
                t += f"s_add_u32 s{S_GB}, s{S_J}, {kw['r']}\ns_and_b32 s{S_GB}, s{S_GB}, 3\ns_mul_i32 s{S_GB}, s{S_GB}, {256 * 1152}\ns_add_u32 s{S_GB}, s{S_GB}, s{S_WOB}\n"
                r, mod = SRD_WO, o["wo_mod"]
                if k == "wo":
                    v, offs = [VU0] * 4, [(kw["h"] * 128 + kw["sub"] * 64) * 1152 + u * 18432 for u in range(4)]
                else:
                    t += f"s_lshr_b32 s{S_T0}, s{S_O}, 1\ns_xor_b32 s{S_T0}, s{S_T0}, {kw['sub'] ^ 1}\ns_lshl_b32 s{S_T0}, s{S_T0}, 7\ns_add_u32 s{S_GB}, s{S_GB}, s{S_T0}\n"
                    v, offs = [VF] * 4, [128 * 1152 + u * 36864 for u in range(4)]
            elif k == "l8":
                gb = S_OWNB
                v, r, offs, mod = [VE] * 4, SRD_WO, [kw["h"] * 128 * 1152 + 1024 + u * 36864 for u in range(4)], o["wo_mod"]
            elif k == "o":
                t += f"s_add_u32 s{S_GB}, s{S_J}, {kw['r']}\ns_and_b32 s{S_GB}, s{S_GB}, 3\ns_andn2_b32 s{S_T0}, s{S_CID}, 3\ns_add_u32 s{S_GB}, s{S_GB}, s{S_T0}\ns_mul_i32 s{S_GB}, s{S_GB}, {o['ostride']}\n"
                v, r, offs, mod = [VL] * 4, SRD_WS, [WS_O + kw["h"] * 32768 + kw["sub"] * 16384 + u * 4096 for u in range(4)], o["o_mod"]
            for u in range(4):
                t += f"s_add_u32 m0, s{S_L1024}, {g.addr + u * 4096}\ns_add_u32 s{S_SOFF}, s{gb}, {offs[u]}\n"
                t += f"buffer_load_dwordx4 v{v[u]}, {srd(r)}, s{S_SOFF} offen{mod} lds\n"
                if not var:
                    vm.append(g.name)
            pend_pub.append(g)
            if gi == 0:
                t += second
                continue
            if gi == 1:
                t += third
            for pg in pend_pub:
                new = self.stages[pg.need]["new"]
                t += f"s_add_u32 m0, s{S_RDY}, {LDS_READY + 32 * pg.need + 4 * new.index(pg)}\ns_mov_b64 exec, {3 if len(new) == 1 else 1}\n"
                t += f"global_load_lds_dword v{VZ}, s[{S_TAB}:{S_TAB + 1}]\ns_mov_b64 exec, -1\n"
                if not var:
                    vm.append("f")
            pend_pub = []
            if gi == 2:
                t += "s_branch L_lrest\n" + self.cstub() + "L_lrest:\n" + rest
                if o["stamps"]:
                    t += self.lstamp("start")
            if gi > 2:
                t += f"s_waitcnt vmcnt({o['thr']})\n"
                if o["stamps"] and not var and (o.get("only") is None or g.name in o["only"]):
                    t += self.lstamp(g.name)
            t += skip1
        t += f"""s_cmp_lg_u32 s{S_W}, 0
s_cbranch_scc1 L_ldone
v_and_b32 v1, 15, v0
s_lshl_b32 s{S_T0}, s{S_COMP}, 4
v_add_u32 v1, s{S_T0}, v1
v_lshlrev_b32 v1, 2, v1
v_add_u32 v1, s{S_J}, v1
v_lshlrev_b32 v1, 7, v1
s_add_u32 s{S_T1}, s{S_TAG}, 3
L_l8poll:
buffer_load_dword v2, v1, {srd(SRD_WS)}, 0 offen sc1
s_waitcnt vmcnt(0)
v_subrev_u32 v2, s{S_T1}, v2
v_cmp_lt_u32 vcc, 4, v2
s_nop 1
s_cbranch_vccz L_l8ok
s_sleep 2
""" + self.spin_guard("L_l8ok") + f"""s_branch L_l8poll
L_l8ok:
s_lshl_b32 s{S_T0}, s{S_CID}, 14
s_add_u32 s{S_T0}, s{S_T0}, {WS_L8}
"""
        R0 = 100
        for c in range(16):
            if c and c % 4 == 0:
                t += f"s_add_u32 s{S_T0}, s{S_T0}, 4096\n"
            t += f"buffer_load_dwordx4 v[{R0 + 4 * c}:{R0 + 3 + 4 * c}], v{VL}, {srd(SRD_WS)}, s{S_T0} offen offset:{(c % 4) * 1024} sc1\n"
        t += f"""v_and_b32 v1, 31, v0
v_lshrrev_b32 v2, 5, v0
v_and_b32 v5, 19, v1
v_bfe_u32 v6, v1, 2, 1
v_lshl_add_u32 v5, v6, 3, v5
v_bfe_u32 v6, v1, 3, 1
v_lshl_add_u32 v5, v6, 2, v5
v_mul_u32_u24 v6, {4 * 2304}, v2
v_lshl_add_u32 v9, v5, 1, v6
s_lshl_b32 s{S_T0}, s{S_B}, 2
s_add_u32 s{S_T0}, s{S_T0}, s{S_J}
s_lshl_b32 s{S_T0}, s{S_T0}, 2
s_add_u32 s{S_T0}, s{S_T0}, s{S_O}
s_mul_i32 s{S_T0}, s{S_T0}, {8 * 2304}
s_mul_i32 s{S_T1}, s{S_P}, 1152
s_add_u32 s{S_T0}, s{S_T0}, s{S_T1}
s_add_u32 s{S_T0}, s{S_T0}, 1024
"""
        A0 = 90
        for c in range(16):
            t += f"s_waitcnt vmcnt({15 - c})\n"
            for d in range(4):
                s = R0 + 4 * c + d
                if c == 0:
                    t += f"v_lshlrev_b32 v{A0 + 2 * d}, 16, v{s}\nv_and_b32 v{A0 + 1 + 2 * d}, 0xffff0000, v{s}\n"
                else:
                    t += f"v_lshlrev_b32 v2, 16, v{s}\nv_and_b32 v3, 0xffff0000, v{s}\n"
                    t += f"v_pk_add_f32 v[{A0 + 2 * d}:{A0 + 1 + 2 * d}], v[{A0 + 2 * d}:{A0 + 1 + 2 * d}], v[2:3]\n"
        for d in range(4):
            tt, p = d >> 1, d & 1
            t += f"v_cvt_pk_bf16_f32 v{4 + d}, v{A0 + 2 * d}, v{A0 + 1 + 2 * d}\n"
            t += f"s_add_u32 s{S_T1}, s{S_T0}, {2 * p * 2304}\n"
            t += f"buffer_store_short v{4 + d}, v9, {srd(SRD_OUT)}, s{S_T1} offen offset:{tt * 64}{o['out_mod']}\n"
            t += f"buffer_store_short_d16_hi v{4 + d}, v9, {srd(SRD_OUT)}, s{S_T1} offen offset:{tt * 64 + 2304}{o['out_mod']}\n"
        t += "L_ldone:\n"
        if o["stamps"]:
            self.lnames.append("done")
            t += self.stamp_out([240, 241], len(self.lnames) - 1)
        t += "s_endpgm\n"
        pst = f"s_memrealtime s[60:61]\ns_add_u32 m0, s{S_NEED}, 40\ns_waitcnt lgkmcnt(0)\nv_writelane_b32 v241, s60, m0\n" if o.get("fstamps") else ""
        t += f"""L_pollstep:
s_sleep {o["psleep"]}
s_cmp_ge_u32 s{S_NEED}, 3
s_cbranch_scc1 L_pret
s_add_u32 s{S_PCNT}, s{S_PCNT}, 1
s_mov_b64 exec, 15
s_and_b32 s{S_T1}, s{S_PCNT}, {o["pslow"]}
s_cbranch_scc1 L_pfast
buffer_load_dword v{VPOLL}, v{VU1}, {srd(SRD_WS)}, 0 offen sc1
s_branch L_pwait
L_pfast:
s_mov_b32 s{S_T0}, {WS_FLAGS2}
buffer_load_dword v{VPOLL2}, v{VU1}, {srd(SRD_WS)}, s{S_T0} offen sc1
L_pwait:
s_waitcnt vmcnt(0)
L_pagain:
s_mov_b64 exec, 15
s_add_u32 s{S_T1}, s{S_TAG}, s{S_NEED}
s_sub_u32 s{S_T3}, 7, s{S_NEED}
v_subrev_u32 v4, s{S_T1}, v{VPOLL}
v_subrev_u32 v5, s{S_T1}, v{VPOLL2}
v_min_u32 v4, v4, v5
v_cmp_lt_u32 vcc, s{S_T3}, v4
s_mov_b64 exec, -1
s_nop 0
s_cbranch_vccnz L_pret
{pst}s_add_u32 s{S_NEED}, s{S_NEED}, 1
s_cmp_lt_u32 s{S_NEED}, 3
s_cbranch_scc1 L_pagain
L_pret:
s_setpc_b64 s[{S_LINK}:{S_LINK + 1}]
L_waittag:
s_lshl_b32 s{S_T0}, s{S_COMP}, 2
L_wrtag:
buffer_load_dword v4, v{VZ}, {srd(SRD_DBG)}, s{S_T0} offen sc1
s_waitcnt vmcnt(0)
v_readfirstlane_b32 s{S_TAG}, v4
s_nop 1
s_cmp_lg_u32 s{S_TAG}, 0
s_cbranch_scc1 L_wrret
""" + self.spin_guard("L_wrret") + f"""s_branch L_wrtag
L_wrret:
s_setpc_b64 s[{S_LINK}:{S_LINK + 1}]
"""
        return t

    def generate(self):
        o = self.o
        self.build_mfma()
        self.alloc_slots()
        self.build_fillers()
        S = Stream()
        if o["stamps"]:
            self.stamp(S, "start")
        self.compute_stream(S)
        self.compute_tail(S)
        t = f"; @launch grid=(256,1,1) block=(512,1,1) lds={LDS_BYTES}\n"
        t += f""".amdgcn_target "amdgcn-amd-amdhsa--gfx950"
.text
.globl {KNAME}
.p2align 8
.type {KNAME},@function
{KNAME}:
"""
        t += self.prologue() + self.loader() + ".p2align 6\nL_compute:\n" + "s_nop 0\n" * o.get("cphase", 0) + self.compute_prologue() + S.text()
        if o["stamps"]:
            self.cnames.append("done")
            t += self.stamp_out([V_ST], len(self.cnames) - 1)
        t += "L_end:\ns_endpgm\n"
        for st in self.spins:
            t += f"""L_spin{st}:
ds_read_b32 v{V_FLAG}, v{V_FA} offset:{LDS_READY + 32 * st}
s_waitcnt lgkmcnt(0)
v_cmp_ne_u32 vcc, 1, v{V_FLAG}
s_nop 1
s_cbranch_vccz L_back{st}
{"s_sleep %d" % o["csleep"] if o.get("csleep") is not None else ""}
""" + self.spin_guard(f"L_back{st}") + f"s_branch L_spin{st}\n"
        t += f"""L_lead:
s_waitcnt vmcnt({S.marks["lead"]})
v_bfe_u32 v{V_MX0}, v{V_MX0}, 3, 8
v_bfe_u32 v{V_MX1}, v{V_MX1}, 3, 8
v_bfe_u32 v{V_MC}, v{V_MC}, 3, 8
s_mov_b32 s{S_T1}, 0
L_scan:
v_cmp_eq_u32 vcc, s{S_T1}, v{V_MX0}
v_cmp_eq_u32 s[{S_T2}:{S_T3}], s{S_T1}, v{V_MX1}
v_cmp_eq_u32 s[84:85], s{S_T1}, v{V_MC}
s_nop 1
s_or_b64 vcc, vcc, s[{S_T2}:{S_T3}]
s_or_b64 vcc, vcc, s[84:85]
s_cbranch_vccz L_scandone
s_add_u32 s{S_T1}, s{S_T1}, 1
s_branch L_scan
L_scandone:
s_lshl_b32 s{S_T1}, s{S_T1}, 3
s_or_b32 s{S_T1}, s{S_T1}, 0x800
v_mov_b32 v{V_TMP1}, s{S_T1}
s_mov_b64 exec, 1
buffer_store_dword v{V_TMP1}, v{V_ZERO}, {srd(SRD_DBG)}, s{S_T4} offen sc1
s_mov_b64 exec, -1
s_branch L_leadret
L_tagspin:
buffer_load_dword v{V_TAG}, v{V_ZERO}, {srd(SRD_DBG)}, s{S_T4} offen sc1
s_waitcnt vmcnt(0)
v_cmp_eq_u32 vcc, 0, v{V_TAG}
s_nop 1
s_cbranch_vccz L_tagok
""" + self.spin_guard("L_tagok") + f"""s_branch L_tagspin
L_fslow:
buffer_load_dword v{V_TMP1}, v{V_TMP0}, {srd(SRD_WS)}, 0 offen sc1
s_add_u32 s{S_T1}, s{S_TAG}, 4
s_waitcnt vmcnt(0)
v_subrev_u32 v{V_TMP1}, s{S_T1}, v{V_TMP1}
v_cmp_lt_u32 vcc, 3, v{V_TMP1}
s_add_u32 s{S_SPIN}, s{S_SPIN}, 1
s_cmp_gt_u32 s{S_SPIN}, {o['spin_limit']}
s_cbranch_scc1 L_fforce
s_cbranch_vccnz L_fsret
L_fforce:
s_bitset1_b32 s{S_GOT}, 31
L_fsret:
s_setpc_b64 s[{S_LINK}:{S_LINK + 1}]
L_ownspin:
buffer_load_dword v{V_TMP1}, v{V_TMP0}, {srd(SRD_WS)}, 0 offen offset:4 sc1
s_waitcnt vmcnt(0)
v_subrev_u32 v{V_TMP1}, s{S_T1}, v{V_TMP1}
v_cmp_lt_u32 vcc, 6, v{V_TMP1}
s_nop 1
s_cbranch_vccz L_ownok
""" + self.spin_guard("L_ownok") + "s_branch L_ownspin\n"
        t += f""".p2align 6
L_ones:
.fill 128, 4, 1
L_codeend:
.section .rodata,"a"
.p2align 6
.amdhsa_kernel {KNAME}
  .amdhsa_next_free_vgpr 256
  .amdhsa_next_free_sgpr 102
  .amdhsa_accum_offset 256
  .amdhsa_group_segment_fixed_size 0
  .amdhsa_kernarg_size 104
  .amdhsa_user_sgpr_count 2
  .amdhsa_user_sgpr_kernarg_segment_ptr 1
  .amdhsa_system_sgpr_workgroup_id_x 1
  .amdhsa_float_denorm_mode_32 3
.end_amdhsa_kernel
"""
        self.stats = dict(nops=S.nops, waits=S.nwaits, instr=S.ninstr, mfma=len(self.ms), stages=len(self.stages))
        return t


if __name__ == "__main__":
    import json
    opt = json.loads(sys.argv[2]) if len(sys.argv) > 2 else {}
    g = Gen(**opt)
    txt = g.generate()
    open(sys.argv[1], "w").write(txt)
    json.dump([g.cnames, g.lnames], open(sys.argv[1] + ".names", "w"))
    print(g.stats, file=sys.stderr)
```

```python
import os, sys
os.environ['GEN4']='1'
from mk import *
import mk
mk.ONLY[:] = ["Q0a","Q0b","Q1a","Q2a"]
V = {"Z_a": dict(early1=False), "Z_b": dict()}
for f,opt in V.items(): build(f+".s", opt); build(f+"t.s", opt, stamped="tiny")
```
